```python
import torch

def _softmax(x, axis=-1):
    return torch.softmax(x, dim=axis)
def _gelu(x):
    return torch.nn.functional.gelu(x, approximate="tanh")
def _silu(x):
    return torch.nn.functional.silu(x)
def _sigmoid(x):
    return torch.sigmoid(x)
def _layernorm(x, axis=-1, eps=1e-5):
    m = x.mean(dim=axis, keepdim=True)
    v = x.var(dim=axis, keepdim=True, unbiased=False)
    return (x - m) / torch.sqrt(v + eps)
def _scatter_add(tgt, idx, src, axis=0):
    return tgt.clone().index_add_(axis, idx, src)
def _segment_sum(src, seg, n):
    out = torch.zeros((n,) + src.shape[1:], dtype=src.dtype)
    return out.index_add_(0, seg, src)
def _pad(x, pw):
    flat = tuple(v for pair in reversed(pw) for v in pair)
    return torch.nn.functional.pad(x, flat)

kernel_name = 'concat_heads__mha_block_cached__compressed_kv_cla__decode'

def setup_inputs():

    _w = (lambda a: (lambda t: t.to(torch.bfloat16) if t.is_floating_point() else t)(torch.as_tensor(a)))
    def _A_setup():
        B, Sq, D = 4, 1, 576
        H, Sk, Dh = 32, 4096, 128
        return {
            "x": _w((lambda *s: torch.randn(*s, dtype=torch.bfloat16) * 1.6)(B, Sq, D)),
            "k_cache": _w((lambda *s: torch.randn(*s, dtype=torch.bfloat16) * 1.6)(B, H, Sk, Dh)),
            "v_cache": _w((lambda *s: torch.randn(*s, dtype=torch.bfloat16) * 0.05)(B, H, Sk, Dh)),
            "wq": _w((lambda *s: torch.randn(*s, dtype=torch.bfloat16) * 1.6)(D, H * Dh) * (D ** -0.5)),
            "wo": _w((lambda *s: torch.randn(*s, dtype=torch.bfloat16) * 0.05)(H * Dh, D) * ((H * Dh) ** -0.5)),
        }
    _A_in = _A_setup()

    def _B_setup():
        B, H, Sq, Sk, D, M = 4, 32, 1, 4096, 128, 576
        Dc = 4 * D
        return {
            "x": _w((lambda *s: torch.randn(*s, dtype=torch.bfloat16) * 3.2)(B, Sq, M)),
            "c_kv": _w((lambda *s: torch.randn(*s, dtype=torch.bfloat16) * 0.1)(B, Sk, Dc)),
            "w_q": _w((lambda *s: torch.randn(*s, dtype=torch.bfloat16) * 6.4)(M, H, D) * (M ** -0.5)),
            "w_uk": _w((lambda *s: torch.randn(*s, dtype=torch.bfloat16) * 6.4)(Dc, H, D) * (Dc ** -0.5)),
            "w_uv": _w((lambda *s: torch.randn(*s, dtype=torch.bfloat16) * 0.1)(Dc, H, D) * (Dc ** -0.5)),
            "w_o": _w((lambda *s: torch.randn(*s, dtype=torch.bfloat16) * 0.1)(H, D, M) * ((H * D) ** -0.5)),
        }
    _B_in = _B_setup()

    return {
        "A_x": _A_in["x"],
        "A_k_cache": _A_in["k_cache"],
        "A_v_cache": _A_in["v_cache"],
        "A_wq": _A_in["wq"],
        "A_wo": _A_in["wo"],
        "B_x": _B_in["x"],
        "B_c_kv": _B_in["c_kv"],
        "B_w_q": _B_in["w_q"],
        "B_w_uk": _B_in["w_uk"],
        "B_w_uv": _B_in["w_uv"],
        "B_w_o": _B_in["w_o"],
    }

def reference(A_x, A_k_cache, A_v_cache, A_wq, A_wo, B_x, B_c_kv, B_w_q, B_w_uk, B_w_uv, B_w_o):
    def _A_ref(x, k_cache, v_cache, wq, wo):
        B, Sq, D = x.shape
        H, Dh = 32, 128
        q = (lambda x, *d: x.permute(*d))((x @ wq).reshape(B, Sq, H, Dh), 0, 2, 1, 3)
        scores = torch.einsum("bhqd,bhkd->bhqk", q, k_cache) * (Dh ** -0.5)
        p = _softmax(scores, axis=-1)
        o = torch.einsum("bhqk,bhkd->bhqd", p, v_cache)
        return (lambda x, *d: x.permute(*d))(o, 0, 2, 1, 3).reshape(B, Sq, H * Dh) @ wo

    def _B_ref(x, c_kv, w_q, w_uk, w_uv, w_o):
        B, Sq, M = x.shape[0], x.shape[1], x.shape[2]
        Sk = c_kv.shape[1]
        H, D = w_q.shape[1], w_q.shape[2]
        q = torch.einsum("bqm,mhd->bhqd", x, w_q)
        k = torch.einsum("bkc,chd->bhkd", c_kv, w_uk)
        v = torch.einsum("bkc,chd->bhkd", c_kv, w_uv)
        scores = torch.einsum("bhqd,bhkd->bhqk", q, k) * (D ** -0.5)
        off = Sk - Sq
        qi = torch.arange(Sq)[:, None]
        kj = torch.arange(Sk)[None, :]
        cmask = kj <= (qi + off)
        scores = torch.where(cmask[None, None], scores, -1e9)
        p = _softmax(scores, axis=-1)
        ctx = torch.einsum("bhqk,bhkd->bhqd", p, v)
        return torch.einsum("bhqd,hdm->bqm", ctx, w_o)

    a = _A_ref(A_x, A_k_cache, A_v_cache, A_wq, A_wo)
    b = _B_ref(B_x, B_c_kv, B_w_q, B_w_uk, B_w_uv, B_w_o)
    return torch.concatenate([a, b], axis=-1)
```

```python
import re

_REG = re.compile(r'\b([vas])(\d+)\b|\b([vas])\[(\d+):(\d+)\]|\b(vcc|exec|m0|scc)\b')
TRANS = ('v_exp_f32', 'v_log_f32', 'v_rcp_f32', 'v_rsq_f32', 'v_sqrt_f32', 'v_sin_f32', 'v_cos_f32')

def regs_of(tok):
    out = []
    for m in _REG.finditer(tok):
        if m.group(1): out.append((m.group(1), int(m.group(2))))
        elif m.group(3): out += [(m.group(3), i) for i in range(int(m.group(4)), int(m.group(5)) + 1)]
        else: out.append((m.group(6), 0))
    return out

def split_ops(s):
    ops, depth, cur = [], 0, ''
    for ch in s:
        if ch in '[(': depth += 1
        if ch in '])': depth -= 1
        if ch == ',' and depth == 0:
            ops.append(cur.strip()); cur = ''
        else: cur += ch
    if cur.strip(): ops.append(cur.strip())
    return ops

class Ins:
    def __init__(self, text):
        self.text = text
        t = text.split(';')[0].strip()
        parts = t.split(None, 1)
        self.op = op = parts[0]
        rest = parts[1] if len(parts) > 1 else ''
        ops = split_ops(rest)
        self.dpp = ('_dpp' in op) or any(k in rest for k in ('quad_perm', 'row_ror', 'row_shr', 'row_shl', 'row_newbcast', 'row_bcast', 'row_mirror', 'row_half_mirror'))
        self.mfma = op.startswith('v_mfma')
        self.valu = op.startswith('v_') and not self.mfma
        self.salu = op.startswith('s_') and not op.startswith(('s_load', 's_buffer_load', 's_memrealtime', 's_memtime', 's_waitcnt', 's_nop', 's_barrier', 's_branch', 's_cbranch', 's_endpgm', 's_sleep', 's_setprio', 's_atomic'))
        self.vmem = op.startswith(('buffer_', 'global_', 'flat_'))
        self.ds = op.startswith('ds_')
        self.trans = any(op.startswith(x) for x in TRANS)
        self.dot = op.startswith('v_dot')
        self.perml = op.startswith('v_permlane')
        self.rdlane = op.startswith(('v_readlane', 'v_readfirstlane'))
        self.ldsdma = self.vmem and (re.search(r'\blds\b', rest) is not None or 'load_lds' in op)
        self.passes = 0
        if self.mfma:
            self.passes = 8 if '32x32x16' in op else 4 if '16x16x32' in op else 2 if '4x4x4' in op else None
            assert self.passes, op
        R = [regs_of(o.split()[0] if o and not o.startswith(('v[', 'a[', 's[')) and ' ' in o else o.split(' ')[0]) for o in ops]
        self.w, self.r, self.srcc, self.ab, self.sdata = [], [], [], [], []
        self.nop = 0
        if op == 's_nop':
            self.nop = int(ops[0], 0) + 1
        elif self.mfma:
            self.w = R[0]; self.ab = R[1] + R[2]; self.srcc = R[3]; self.r = self.ab + self.srcc
        elif self.valu:
            if self.perml:
                self.w = R[0] + R[1]; self.r = R[0] + R[1]
            elif op.startswith(('v_add_co', 'v_sub_co', 'v_addc_co', 'v_subb_co', 'v_mad_u64')):
                self.w = R[0] + R[1]; self.r = sum(R[2:], [])
            else:
                self.w = R[0]; self.r = sum(R[1:], [])
                if op.startswith(('v_fmac', 'v_dot2c', 'v_pk_fmac', 'v_writelane')): self.r += R[0]
                if op.startswith('v_cmpx'): self.w = self.w + [('exec', 0)]
        elif self.vmem:
            if 'store' in op:
                self.r = sum(R, [])
                data = R[0] if op.startswith('buffer_') else R[1]
                if 'x3' in op or 'x4' in op: self.sdata = data
            elif 'atomic' in op:
                self.r = sum(R, [])
                if 'sc0' in rest: self.w = R[0]
            elif self.ldsdma:
                self.r = sum(R, []) + [('m0', 0)]
            elif op.startswith(('buffer_inv', 'buffer_wbl2')):
                pass
            else:
                self.w = R[0]; self.r = sum(R[1:], [])
                if 'd16' in op: self.r += R[0]
        elif self.ds:
            if op.startswith(('ds_write', 'ds_add')): self.r = sum(R, [])
            else: self.w = R[0]; self.r = sum(R[1:], [])
        elif self.salu:
            if op.startswith('s_cmp'): self.r = sum(R, [])
            else:
                self.w = R[0] if R else []; self.r = sum(R[1:], [])
                if 'saveexec' in op: self.w = self.w + [('exec', 0)]
        elif op.startswith(('s_load', 's_memrealtime', 's_memtime')):
            self.w = R[0]; self.r = sum(R[1:], [])
        self.w = set(self.w); self.r = set(self.r); self.srcc = set(self.srcc); self.ab = set(self.ab); self.sdata = set(self.sdata)

def isv(r): return r[0] in 'va' and r[0] != 'vcc' and len(r[0]) == 1
def iss(r): return r[0] == 's' or r[0] == 'vcc'

def need(p, c):
    n = 0
    pw_v = {r for r in p.w if isv(r)}
    pw_s = {r for r in p.w if iss(r)}
    if p.valu:
        if c.valu and c.dpp and (pw_v & c.r): n = max(n, 2)
        if c.rdlane and (pw_v & c.r): n = max(n, 1)
        if c.perml and (pw_v & c.r): n = max(n, 2)
        if p.trans and (c.valu or c.mfma) and not c.trans and (pw_v & c.r): n = max(n, 1)
        if c.mfma and (pw_v & c.r): n = max(n, 2)
        if p.dot and (pw_v & (c.r | c.w)):
            if c.op == p.op and not (pw_v & set(list(c.r)) - set(regs_of(split_ops(c.text.split(';')[0].split(None, 1)[1])[-1].split(' ')[0]))): pass
            else: n = max(n, 3)
        if pw_s:
            if c.valu and (pw_s & c.r): n = max(n, 4 if c.rdlane or c.op.startswith('v_writelane') else 2)
            if c.vmem and (pw_s & c.r): n = max(n, 5)
            if c.salu and (pw_s & c.r): n = max(n, 1)
        if ('exec', 0) in p.w:
            if c.dpp: n = max(n, 5)
            if c.mfma or c.rdlane or c.perml: n = max(n, 4)
        if 'sdwa' in p.op or 'op_sel' in p.text:
            if c.valu and (pw_v & (c.r | c.w)): n = max(n, 1)
    if p.mfma:
        big = {2: 5, 4: 8, 8: 12}[p.passes]
        if c.mfma:
            if p.w & c.ab: n = max(n, big)
            if p.w & c.srcc:
                if p.w == c.srcc and p.passes == c.passes: n = max(n, 2 if p.passes == 2 else 0)
                else: n = max(n, {2: 4, 4: 6, 8: 10}[p.passes])
            elif p.w & c.w:
                n = max(n, big)
        elif (c.valu or c.vmem or c.ds) and (p.w & (c.r | c.w)): n = max(n, big)
        if c.valu and (p.srcc & c.w): n = max(n, {2: 1, 4: 3, 8: 7}[p.passes])
    if p.salu and ('m0', 0) in p.w and c.ldsdma: n = max(n, 1)
    if p.sdata and (p.sdata & c.w): n = max(n, 2)
    return n

class Asm:
    def __init__(self):
        self.lines = []
        self.hist = []
        self.nops = 0
        self.uid = 0
    def raw(self, s): self.lines.append(s)
    def c(self, s): self.lines.append('    ; ' + s)
    def label(self, name, clean=False):
        self.lines.append(name + ':')
    def newlabel(self, base):
        self.uid += 1
        return f'L_{base}_{self.uid}'
    def settle(self, n=12):
        left = n
        while left > 0:
            k = min(left, 16); self(f's_nop {k-1}'); left -= k
    def __call__(self, text):
        for t in text.strip().split('\n'):
            t = t.strip()
            if not t or t.startswith(';'): continue
            ins = Ins(t)
            if not ins.nop:
                dist = 0; req = 0
                for p in reversed(self.hist):
                    n = need(p, ins)
                    if n > dist: req = max(req, n - dist)
                    dist += p.nop if p.nop else 1
                    if dist >= 20: break
                if req:
                    self.nops += req
                    nop = Ins(f's_nop {req-1}')
                    self.lines.append(f'    s_nop {req-1}')
                    self.hist.append(nop)
            self.lines.append('    ' + t)
            self.hist.append(ins)
            if len(self.hist) > 64: self.hist = self.hist[-32:]
    def text(self): return '\n'.join(self.lines) + '\n'
```

```python
import sys, os, math, struct
sys.path.insert(0, os.path.dirname(os.path.abspath(__file__)))
from asmlib import Asm

KN = "concat_heads__mha_block_cached__compressed_kv_cla__decode"
def f2u(x): return struct.unpack('<I', struct.pack('<f', x))[0]
LOG2E = 1.4426950408889634
SCALE = 128 ** -0.5
M7 = (1 << 32) // 7 + 1
M18 = (1 << 32) // 18 + 1

WS_APART, WS_QABS, WS_BO, WS_BML, WS_Y, WS_YPART = 0x0, 0x100000, 0x200000, 0x300000, 0x400000, 0x80000
WS_STAMP = 0x10000000
DBG_S1, DBG_S2 = 128, 192
LDS_X = 131072
P_AX, P_K, P_V, P_WQ, P_WO, P_BX, P_CKV, P_BWQ, P_WUK, P_WUV, P_BWO, P_OUT, P_DBG, P_WS = [4 + 2 * i for i in range(14)]
SRD_A, SRD_B, SRD_C, SRD_WS, SRD_D = 32, 36, 40, 44, 48
sW, sH, sJ = 's3', 's52', 's53'
RING = 7

class Gen:
    def __init__(self, stamps=False, wq_flags='', opts=None):
        self.a = Asm(); self.stamps = stamps; self.nst = 0; self.wq_flags = wq_flags
        self.o = opts or {}
    def srd(self, d, p, nbytes):
        self.a(f"s_mov_b32 s{d}, s{p}\ns_mov_b32 s{d+1}, s{p+1}\ns_mov_b32 s{d+2}, {nbytes}\ns_mov_b32 s{d+3}, 0x20000")
    def S(self, d): return f"s[{d}:{d+3}]"
    def stamp(self, i):
        if self.stamps: self.a(f"s_memrealtime s[{64+2*i}:{65+2*i}]")
    def write_stamps(self):
        if not self.stamps: return
        a = self.a
        a("s_waitcnt lgkmcnt(0)")
        a(f"s_lshl_b32 s54, s2, 2\ns_add_u32 s54, s54, {sW}\ns_lshl_b32 s54, s54, 7\ns_add_u32 s54, s54, {WS_STAMP}")
        a("v_mov_b32 v2, 0")
        for i in range(8):
            for k in range(4): a(f"v_mov_b32 v{4+k}, s{64+4*i+k}")
            a(f"buffer_store_dwordx4 v[4:7], v2, {self.S(SRD_WS)}, s54 offen offset:{16*i}")
            a("s_nop 1")

    def selectors(self):
        a = self.a
        a("v_and_b32 v5, 1, v3")
        a("v_cmp_eq_u32 vcc, 1, v5")
        a("v_mov_b32 v5, 0x0c0c0100\nv_mov_b32 v6, 0x01000c0c\nv_cndmask_b32 v5, v5, v6, vcc")
        a("v_mov_b32 v6, 0x0c0c0302\nv_mov_b32 v7, 0x03020c0c\nv_cndmask_b32 v6, v6, v7, vcc")
        a("v_bfe_u32 v7, v3, 1, 2")
        a("v_mov_b32 v16, 0x0c0c0c0c")
        for q in range(4):
            a(f"v_cmp_eq_u32 vcc, {q}, v7")
            a(f"v_cndmask_b32 v{8+2*q}, v16, v5, vcc\nv_cndmask_b32 v{9+2*q}, v16, v6, vcc")

    def proj_mfma(self, ts, act, actp, tmp, acc, wreg, first):
        a = self.a
        for t in ts:
            for p in range(2):
                tb = tmp + ((2 * t + p) & 3) * 4
                src = act + p * actp + (t >> 1)
                for q in range(4):
                    a(f"v_perm_b32 v{tb+q}, v{src}, v{src}, v{8+2*q+(t&1)}")
                c = "0" if (first and t == ts[0]) else f"v[{acc+4*p}:{acc+4*p+3}]"
                a(f"v_mfma_f32_16x16x32_bf16 v[{acc+4*p}:{acc+4*p+3}], v[{tb}:{tb+3}], {wreg(t)}, {c}")

    def proj_store_partials(self, acc, va):
        a = self.a
        a(f"v_lshrrev_b32 v{va}, 1, v4\nv_lshlrev_b32 v{va}, 9, v{va}")
        a(f"v_lshl_add_u32 v{va}, v3, 5, v{va}")
        a(f"v_and_b32 v{va+1}, 1, v4\nv_lshl_add_u32 v{va}, v{va+1}, 4, v{va}")
        a(f"s_lshl_b32 s54, {sW}, 11\ns_add_u32 s54, s54, {LDS_X}\nv_add_u32 v{va}, s54, v{va}")
        a(f"ds_write_b128 v{va}, v[{acc}:{acc+3}]\nds_write_b128 v{va}, v[{acc+4}:{acc+7}] offset:1024")
        a("s_waitcnt lgkmcnt(0)\ns_barrier")

    def sum4_pack(self, va, off, tmp, dst):
        a = self.a
        for w in range(4):
            a(f"ds_read_b128 v[{tmp+8*w}:{tmp+8*w+3}], v{va} offset:{off+2048*w}")
            a(f"ds_read_b128 v[{tmp+8*w+4}:{tmp+8*w+7}], v{va} offset:{off+2048*w+16}")
        a("s_waitcnt lgkmcnt(0)")
        for e in range(8):
            a(f"v_add_f32 v{tmp+e}, v{tmp+e}, v{tmp+8+e}\nv_add_f32 v{tmp+16+e}, v{tmp+16+e}, v{tmp+24+e}")
        for e in range(8): a(f"v_add_f32 v{tmp+e}, v{tmp+e}, v{tmp+16+e}")
        for q in range(4): a(f"v_cvt_pk_bf16_f32 v{dst+q}, v{tmp+2*q}, v{tmp+2*q+1}")

    def operand_from_partials(self, va, tmp, dst):
        a = self.a
        a(f"v_lshrrev_b32 v{va}, 2, v3\nv_lshlrev_b32 v{va}, 9, v{va}\nv_lshl_add_u32 v{va}, v4, 5, v{va}")
        a(f"v_add_u32 v{va}, {LDS_X}, v{va}")
        for kk in range(4): self.sum4_pack(va, kk * 128, tmp, dst + 4 * kk)

    def x_loads(self, srd, act):
        a = self.a
        a(f"v_lshrrev_b32 v5, 3, v3\nv_mul_u32_u24 v5, 1152, v5\nv_mul_u32_u24 v6, 72, v4\nv_add_u32 v5, v5, v6")
        a(f"s_mul_i32 s54, {sW}, 288")
        for p in range(2):
            for k in range(4):
                a(f"buffer_load_dwordx4 v[{act+20*p+4*k}:{act+20*p+4*k+3}], v5, {self.S(srd)}, s54 offen offset:{2304*p+16*k}")
            a(f"buffer_load_dwordx2 v[{act+20*p+16}:{act+20*p+17}], v5, {self.S(srd)}, s54 offen offset:{2304*p+64}")

    def code_prefetch(self, start, end, n):
        a = self.a
        lab = a.newlabel('pc')
        a("s_getpc_b64 s[56:57]")
        a.label(lab)
        a(f"s_sub_u32 s56, s56, {lab}-{start}\ns_subb_u32 s57, s57, 0")
        a(f"v_lshlrev_b32 v5, 7, v0")
        for i in range(n):
            a(f"v_min_u32 v6, {end}-{start}-4, v5")
            a(f"global_load_dword v122, v6, s[56:57]")
            if i + 1 < n: a("v_add_u32 v5, 32768, v5")

    def a_tile_loads(self, slot, which):
        a = self.a
        if 'K' in which:
            a("s_cmp_lt_u32 s58, s59\ns_cselect_b32 s60, s58, 0x8000000\ns_add_u32 s58, s58, 4096")
            for j in range(4):
                r = 144 + slot * 16 + 4 * j
                a(f"buffer_load_dwordx4 v[{r}:{r+3}], v2, {self.S(SRD_A)}, s60 offen offset:{1024*j} nt")
        if 'V' in which:
            for j in range(4):
                r = slot * 16 + 4 * j
                a(f"buffer_load_dwordx4 a[{r}:{r+3}], v2, {self.S(SRD_B)}, s60 offen offset:{1024*j} nt")

    def wq_loads(self, ts, srd, flags):
        a = self.a
        for t in ts:
            a(f"buffer_load_dwordx4 a[{112+4*t}:{115+4*t}], v120, {self.S(srd)}, s61 offen {flags}")
            a("s_add_u32 s61, s61, 8192")

    def wq_addr(self):
        a = self.a
        a(f"v_mul_u32_u24 v120, {36*8192}, v4\nv_lshl_add_u32 v120, v3, 4, v120")
        a(f"s_mul_i32 s61, {sW}, {144*8192}\ns_lshl_b32 s54, {sH}, 8\ns_add_u32 s61, s61, s54")

    def role_a(self):
        a = self.a
        a.label("L_roleA")
        a.c("a = wg-32; xcd = a&7; slot = a>>3; h = xcd*4 + slot/7; j = slot%7")
        a(f"s_sub_u32 s54, s2, 32\ns_and_b32 s55, s54, 7\ns_lshr_b32 s54, s54, 3\ns_mul_hi_u32 s56, s54, {M7}")
        a(f"s_lshl_b32 {sH}, s55, 2\ns_add_u32 {sH}, {sH}, s56\ns_mul_i32 s56, s56, 7\ns_sub_u32 {sJ}, s54, s56")
        a(f"s_lshl_b32 s58, {sJ}, 8\ns_add_u32 s59, s58, 256\ns_mul_hi_u32 s58, s58, {M7}\ns_mul_hi_u32 s59, s59, {M7}")
        a("s_sub_u32 s62, s59, s58")
        a(f"s_lshl_b32 s54, {sW}, 25\ns_lshl_b32 s55, {sH}, 20\ns_add_u32 s54, s54, s55")
        a("s_lshl_b32 s58, s58, 12\ns_lshl_b32 s59, s59, 12\ns_add_u32 s58, s58, s54\ns_add_u32 s59, s59, s54")
        a.c("partial slot offset s63")
        a(f"s_lshl_b32 s63, {sH}, 3\ns_add_u32 s63, s63, {sJ}\ns_lshl_b32 s63, s63, 2\ns_add_u32 s63, s63, {sW}\ns_lshl_b32 s63, s63, 10")
        self.wq_addr()
        self.code_prefetch("L_roleA", "L_roleA_end", 1)
        a("v_mov_b32 v20, -1\nv_mov_b32 v21, -1\nv_mov_b32 v22, -1\nv_mov_b32 v23, -1")
        a("s_waitcnt lgkmcnt(0)")
        self.srd(SRD_A, P_K, 0x8000000); self.srd(SRD_B, P_V, 0x8000000); self.srd(SRD_C, P_WQ, 576 * 8192)
        self.srd(SRD_D, P_AX, 4608); self.srd(SRD_WS, P_WS, 0x20000000)
        self.x_loads(SRD_D, 48)
        W = lambda g: self.wq_loads(range(9 * g, 9 * g + 9), SRD_C, self.wq_flags)
        T = lambda s: self.a_tile_loads(s, 'KV')
        W(0); T(0)
        a(f"buffer_store_dwordx4 v[20:23], v2, {self.S(SRD_WS)}, s63 offen sc1")
        W(1); T(1); W(2); T(2)
        self.selectors()
        wreg = lambda t: f"a[{112+4*t}:{115+4*t}]"
        a("s_waitcnt vmcnt(43)"); W(3); T(3)
        self.proj_mfma(list(range(0, 9)), 48, 20, 96, 112, wreg, True)
        a("s_waitcnt vmcnt(42)"); T(4); T(5)
        self.proj_mfma(list(range(9, 18)), 48, 20, 96, 112, wreg, False)
        a("s_waitcnt vmcnt(41)"); T(6)
        self.proj_mfma(list(range(18, 27)), 48, 20, 96, 112, wreg, False)
        a("s_waitcnt vmcnt(32)")
        self.proj_mfma(list(range(27, 36)), 48, 20, 96, 112, wreg, False)
        self.stamp(1)
        self.proj_store_partials(112, 5)
        a.c("signal: this workgroup's slots are cleared")
        lab = a.newlabel('nosig')
        a(f"s_cmp_lg_u32 {sW}, 0\ns_cbranch_scc1 {lab}")
        a(f"s_lshl_b32 s54, {sH}, 2\nv_mov_b32 v5, s54\nv_mov_b32 v6, 1\ns_mov_b64 exec, 1")
        a(f"global_atomic_add v5, v6, s[{P_DBG}:{P_DBG+1}]")
        a("s_mov_b64 exec, -1")
        a.label(lab)
        a(f"s_lshl_b32 s54, {sW}, 9\ns_add_u32 s54, s54, {LDS_X}\nv_lshl_add_u32 v5, v3, 5, s54")
        self.sum4_pack(5, 0, 48, 124)
        a.c("PV masks v[8:11], acc v[12:15], m v16, l v17, -m*log2e v18")
        a("v_and_b32 v5, 1, v3\nv_cmp_eq_u32 vcc, 1, v5\nv_mov_b32 v5, 0xffff\nv_mov_b32 v6, 0xffff0000\nv_cndmask_b32 v5, v5, v6, vcc")
        a("v_lshrrev_b32 v6, 1, v3")
        for q in range(4):
            a(f"v_cmp_eq_u32 vcc, {q}, v6\nv_cndmask_b32 v{8+q}, 0, v5, vcc")
        for r in range(4): a(f"v_mov_b32 v{12+r}, 0")
        a("v_mov_b32 v16, 0xff800000\nv_mov_b32 v17, 0")
        a(f"s_mov_b32 s96, {f2u(SCALE)}\ns_mov_b32 s97, {f2u(LOG2E)}\ns_mov_b32 s98, 0xffff0000")
        self.stamp(2)
        a.label("L_aloop")
        D = "row_mask:0xf bank_mask"
        for s in range(RING):
            kb = 144 + 16 * s
            a("s_waitcnt vmcnt(52)")
            for e in range(4):
                for j in range(4):
                    c = "0" if e == 0 else f"v{20+j}"
                    a(f"v_dot2_f32_bf16 v{20+j}, v{kb+4*j+e}, v{124+e}, {c}")
            self.a_tile_loads(s, 'K')
            a(f"v_add_f32_dpp v24, v20, v20 row_ror:8 {D}:0x3\nv_add_f32_dpp v25, v22, v22 row_ror:8 {D}:0x3")
            a(f"v_add_f32_dpp v24, v21, v21 row_ror:8 {D}:0xc\nv_add_f32_dpp v25, v23, v23 row_ror:8 {D}:0xc")
            a(f"v_add_f32_dpp v26, v24, v24 row_shl:4 {D}:0x5\nv_add_f32_dpp v26, v25, v25 row_shr:4 {D}:0xa")
            a(f"v_add_f32_dpp v26, v26, v26 quad_perm:[1,0,3,2] {D}:0xf")
            a(f"v_add_f32_dpp v26, v26, v26 quad_perm:[2,3,0,1] {D}:0xf")
            a.c("scores rounded as the reference does: bf16(bf16(q.k) * scale)")
            a("v_cvt_pk_bf16_f32 v26, v26, v26\nv_and_b32 v26, s98, v26\nv_mul_f32 v26, s96, v26")
            a("v_cvt_pk_bf16_f32 v26, v26, v26\nv_and_b32 v26, s98, v26")
            a.c("running max")
            a(f"v_max_f32_dpp v27, v26, v26 row_ror:4 {D}:0xf")
            a(f"v_max_f32_dpp v27, v27, v27 row_ror:8 {D}:0xf")
            a("v_mov_b32 v28, v27\nv_permlane16_swap_b32 v27, v28\nv_max_f32 v27, v27, v28")
            a("v_mov_b32 v28, v27\nv_permlane32_swap_b32 v27, v28\nv_max3_f32 v27, v27, v28, v16")
            a("v_sub_f32 v28, v16, v27\nv_sub_f32 v29, v26, v27\nv_mul_f32 v28, s97, v28\nv_mul_f32 v29, s97, v29")
            a("v_exp_f32 v28, v28\nv_exp_f32 v29, v29\nv_mov_b32 v16, v27")
            a("v_fma_f32 v17, v17, v28, v29\nv_cvt_pk_bf16_f32 v29, v29, v29")
            for r in range(4): a(f"v_mul_f32 v{12+r}, v{12+r}, v28")
            a("s_waitcnt vmcnt(52)")
            for j in range(4):
                bank = [0, 2, 1, 3][j]
                tb = 32 + 4 * j
                for q in range(4):
                    a(f"v_and_b32_dpp v{tb+q}, v29, v{8+q} row_newbcast:{4*bank} {D}:0xf")
            for j in range(4):
                tb = 32 + 4 * j
                a(f"v_mfma_f32_16x16x32_bf16 v[12:15], v[{tb}:{tb+3}], a[{16*s+4*j}:{16*s+4*j+3}], v[12:15]")
            self.a_tile_loads(s, 'V')
            a("s_sub_u32 s62, s62, 1\ns_cmp_eq_u32 s62, 0\ns_cbranch_scc1 L_adone")
        a("s_branch L_aloop")
        a.label("L_adone")
        self.stamp(3)
        a(f"v_add_f32_dpp v17, v17, v17 row_ror:4 {D}:0xf")
        a(f"v_add_f32_dpp v17, v17, v17 row_ror:8 {D}:0xf")
        a("v_mov_b32 v28, v17\nv_permlane16_swap_b32 v17, v28\nv_add_f32 v17, v17, v28")
        a("v_mov_b32 v28, v17\nv_permlane32_swap_b32 v17, v28\nv_add_f32 v17, v17, v28")
        a.c("lanes<32: O (offset (l&15)*32 + (l>>4)*16); lanes>=32: (m, l, m, l) at 512 + (l-32)*16")
        a("v_lshlrev_b32 v5, 5, v3\nv_lshl_add_u32 v5, v4, 4, v5\nv_cmp_gt_u32 vcc, 32, v1\nv_cndmask_b32 v5, v2, v5, vcc")
        for r in range(4): a(f"v_cndmask_b32 v{20+r}, v{16+(r&1)}, v{12+r}, vcc")
        for r in range(4): a(f"v_min_u32 v{20+r}, -2, v{20+r}")
        a(f"buffer_store_dwordx4 v[20:23], v5, {self.S(SRD_WS)}, s63 offen sc1")
        self.stamp(4)
        self.write_stamps()
        a("s_endpgm")
        a.label("L_roleA_end")

    def signal(self, off):
        a = self.a
        lab = a.newlabel('nosig')
        a(f"s_cmp_lg_u32 {sW}, 0\ns_cbranch_scc1 {lab}")
        a(f"v_mov_b32 v5, 0\nv_mov_b32 v6, 1\ns_mov_b64 exec, 1")
        a(f"global_atomic_add v5, v6, s[{P_DBG}:{P_DBG+1}] offset:{off}")
        a("s_mov_b64 exec, -1")
        a.label(lab)

    def wait_counter(self, voff_setup, target):
        a = self.a
        lab, done = a.newlabel('poll'), a.newlabel('polled')
        a(f"s_cmp_lg_u32 {sW}, 0\ns_cbranch_scc1 {done}")
        a(voff_setup)
        a.label(lab)
        a(f"global_load_dword v6, v5, s[{P_DBG}:{P_DBG+1}] sc1")
        a("s_waitcnt vmcnt(0)")
        a(f"v_cmp_le_u32 vcc, {target}, v6")
        a(f"s_cbranch_vccnz {done}\ns_sleep 2\ns_sub_u32 s101, s101, 1\ns_cbranch_scc0 {lab}\ns_mov_b32 s101, 0")
        a.label(done)
        a("s_barrier")

    def y_addr(self):
        a = self.a
        a(f"v_mul_u32_u24 v7, {18*4096}, v4")
        a("v_lshrrev_b32 v5, 3, v3\nv_lshl_add_u32 v6, v5, 13, v7\nv_and_b32 v5, 7, v3\nv_lshl_add_u32 v6, v5, 4, v6")
        a(f"v_lshl_add_u32 v7, v3, 3, v7\nv_add_u32 v7, {16*4096}, v7")
    def y_soff(self, part):
        a = self.a
        a(f"s_lshl_b32 s56, {sH}, 7\ns_add_u32 s56, s56, {WS_Y + part * WS_YPART}")
        a(f"s_lshl_b32 s54, {sW}, 14\ns_add_u32 s54, s54, s56\ns_add_u32 s55, s54, 4096")
        a(f"s_and_b32 s57, {sW}, 1\ns_lshl_b32 s57, s57, 12\ns_add_u32 s56, s56, s57")
    def y_store(self, r0, r1, rx):
        a = self.a
        a(f"buffer_store_dwordx4 v[{r0}:{r0+3}], v6, {self.S(SRD_WS)}, s54 offen sc1")
        a(f"buffer_store_dwordx4 v[{r1}:{r1+3}], v6, {self.S(SRD_WS)}, s55 offen sc1")
        a(f"buffer_store_dwordx2 v[{rx}:{rx+1}], v7, {self.S(SRD_WS)}, s56 offen sc1")

    def oproj_loads(self, srd, rbs):
        a = self.a
        for rb in rbs:
            for hf in range(2):
                a(f"s_add_u32 s54, s99, {rb*36864 + hf*4608}\ns_add_u32 s55, s100, {rb*36864 + hf*4608}")
                for e4 in range(4):
                    e = hf * 4 + e4
                    r = 96 + 32 * rb + 4 * e
                    a(f"buffer_load_dwordx4 v[{r}:{r+3}], v80, {self.S(srd)}, s54 offen offset:{1152*e4} nt")
                for e4 in range(4):
                    e = hf * 4 + e4
                    a(f"buffer_load_dword v{224+8*rb+e}, v81, {self.S(srd)}, s55 offen offset:{1152*e4} nt")
    def oproj_addr(self):
        a = self.a
        a("v_mul_u32_u24 v81, 9216, v4\nv_lshl_add_u32 v80, v3, 4, v81\nv_lshl_add_u32 v81, v3, 2, v81")
        a(f"s_mul_i32 s100, {sH}, 147456\ns_lshl_b32 s54, {sW}, 8\ns_add_u32 s99, s100, s54")
        a(f"s_and_b32 s54, {sW}, 1\ns_lshl_b32 s54, s54, 6\ns_add_u32 s100, s100, s54\ns_add_u32 s100, s100, 1024")
    def oproj_transpose(self):
        a = self.a
        a("s_mov_b32 s54, 0x05040100\ns_mov_b32 s55, 0x07060302")
        for rb in range(4):
            for j in range(8):
                for q in range(4):
                    lo, hi = 96 + 32 * rb + 4 * (2 * q) + (j >> 1), 96 + 32 * rb + 4 * (2 * q + 1) + (j >> 1)
                    a(f"v_perm_b32 v{64+32*rb+4*j+q}, v{hi}, v{lo}, s{54+(j&1)}")
        for rb in range(4):
            for j in range(2):
                for q in range(4):
                    a(f"v_perm_b32 v{192+8*rb+4*j+q}, v{224+8*rb+2*q+1}, v{224+8*rb+2*q}, s{54+j}")
    def oproj_compute_publish(self, part):
        a = self.a
        for kk in range(4):
            for j in range(8):
                c = "0" if kk == 0 else f"v[{224+4*j}:{227+4*j}]"
                a(f"v_mfma_f32_16x16x32_bf16 v[{224+4*j}:{227+4*j}], v[{48+4*kk}:{51+4*kk}], v[{64+32*kk+4*j}:{67+32*kk+4*j}], {c}")
            for j in range(2):
                c = "0" if kk == 0 else f"v[{40+4*j}:{43+4*j}]"
                a(f"v_mfma_f32_16x16x32_bf16 v[{40+4*j}:{43+4*j}], v[{48+4*kk}:{51+4*kk}], v[{192+8*kk+4*j}:{195+8*kk+4*j}], {c}")
        self.y_addr(); self.y_soff(part)
        for j in range(8): a(f"v_min_u32 v{16+j}, -2, v{224+4*j}")
        for j in range(2): a(f"v_min_u32 v{24+j}, -2, v{40+4*j}")
        self.y_store(16, 20, 24)

    def final_reduce(self, part):
        a = self.a
        skip, lab = a.newlabel('nored'), a.newlabel('redpoll')
        D = "row_mask:0xf bank_mask:0xf"
        a(f"s_lshl_b32 s54, {sW}, 5\ns_add_u32 s54, s54, s2\ns_cmp_ge_u32 s54, 72\ns_cbranch_scc1 {skip}")
        a(f"s_lshl_b32 s55, s54, 12\ns_add_u32 s55, s55, {WS_Y + part * WS_YPART}")
        a.c("output address: b = tau/18, k = tau%18")
        a(f"s_mul_hi_u32 s56, s54, {M18}\ns_mul_i32 s57, s56, 18\ns_sub_u32 s57, s54, s57")
        a(f"s_mul_i32 s56, s56, 2304\ns_add_u32 s56, s56, {1152*part}")
        a("s_lshr_b32 s58, s57, 1\ns_lshl_b32 s58, s58, 7\ns_and_b32 s59, s57, 1")
        a("s_cmp_lt_u32 s57, 16\ns_cselect_b32 s60, 3, 6\ns_cselect_b32 s61, 4, 3")
        a("s_lshl_b32 s59, s59, s60\ns_add_u32 s56, s56, s58\ns_add_u32 s56, s56, s59")
        a("v_lshlrev_b32 v5, s61, v1")
        self.srd(SRD_D, P_OUT, 9216)
        a.label(lab)
        for i in range(4):
            a(f"buffer_load_dwordx4 v[{16+4*i}:{19+4*i}], v2, {self.S(SRD_WS)}, s55 offen offset:{1024*i} sc1")
        a("s_waitcnt vmcnt(0)")
        a("v_max3_u32 v32, v16, v17, v18\nv_max3_u32 v33, v19, v20, v21\nv_max3_u32 v34, v22, v23, v24\nv_max3_u32 v35, v25, v26, v27")
        a("v_max3_u32 v32, v32, v28, v29\nv_max3_u32 v33, v33, v30, v31\nv_max3_u32 v32, v32, v33, v34\nv_max_u32 v32, v32, v35")
        ok = a.newlabel('redok')
        a(f"v_cmp_eq_u32 vcc, -1, v32\ns_cbranch_vccz {ok}\ns_sub_u32 s101, s101, 1\ns_cbranch_scc0 {lab}\ns_mov_b32 s101, 0")
        a.label(ok)
        for r in range(4): a(f"v_add_f32 v{16+r}, v{16+r}, v{20+r}\nv_add_f32 v{24+r}, v{24+r}, v{28+r}")
        for r in range(4): a(f"v_add_f32 v{16+r}, v{16+r}, v{24+r}")
        for r in range(4): a(f"v_add_f32_dpp v{16+r}, v{16+r}, v{16+r} row_ror:8 {D}")
        for r in range(4): a(f"v_mov_b32 v{20+r}, v{16+r}")
        for r in range(4): a(f"v_permlane16_swap_b32 v{16+r}, v{20+r}")
        for r in range(4): a(f"v_add_f32 v{16+r}, v{16+r}, v{20+r}")
        for r in range(4): a(f"v_mov_b32 v{20+r}, v{16+r}")
        for r in range(4): a(f"v_permlane32_swap_b32 v{16+r}, v{20+r}")
        for r in range(4): a(f"v_add_f32 v{16+r}, v{16+r}, v{20+r}")
        a("v_cvt_pk_bf16_f32 v16, v16, v17\nv_cvt_pk_bf16_f32 v17, v18, v19")
        a("s_mov_b64 exec, 0xff")
        a(f"buffer_store_dwordx2 v[16:17], v5, {self.S(SRD_D)}, s56 offen")
        a("s_mov_b64 exec, -1")
        a.label(skip)

    def ckv_dma(self):
        a = self.a
        for i in range(8):
            a(f"s_add_u32 m0, s59, {1024*i}\ns_add_u32 s54, s58, {4096*i}")
            a(f"buffer_load_dwordx4 v{20+(i&3)}, {self.S(SRD_A)}, s54 offen nt lds")
        a.c("advance: next tile / next slot")
        a("s_add_u32 s58, s58, 32768\ns_add_u32 s59, s59, 8192\ns_and_b32 s59, s59, 0x7fff\ns_or_b32 s59, s59, s63")
        a("s_cmp_lt_u32 s58, s60\ns_cselect_b32 s58, s58, 0x1000000")

    def role_b(self):
        a = self.a
        D = "row_mask:0xf bank_mask:0xf"
        a.label("L_roleB")
        a("s_mov_b32 s101, 100000")
        a(f"s_and_b32 s54, s2, 7\ns_lshl_b32 {sH}, s54, 2\ns_lshr_b32 s54, s2, 3\ns_add_u32 {sH}, {sH}, s54")
        self.wq_addr()
        self.code_prefetch("L_roleB", "L_roleB_end", 1)
        for r in range(4): a(f"v_mov_b32 v{20+r}, -1")
        a("s_waitcnt lgkmcnt(0)")
        self.srd(SRD_C, P_BWQ, 576 * 8192); self.srd(SRD_D, P_BX, 4608); self.srd(SRD_WS, P_WS, 0x20000000)
        self.srd(SRD_B, P_WUK, 512 * 8192); self.srd(SRD_A, P_CKV, 0x1000000)
        self.x_loads(SRD_D, 48)
        self.wq_loads(range(36), SRD_C, 'nt')
        self.y_addr()
        for part in range(2):
            self.y_soff(part); self.y_store(20, 20, 20)
        a.c("w_uk rows: tile T (0..7) row i -> c = 128w + 32(T>>1) + 8(i>>2) + 4(T&1) + (i&3); lane chunk 4kk+g")
        a("v_lshrrev_b32 v5, 2, v3\nv_lshlrev_b32 v5, 3, v5\nv_and_b32 v6, 3, v3\nv_add_u32 v5, v5, v6")
        a("v_lshlrev_b32 v121, 13, v5\nv_lshl_add_u32 v121, v4, 4, v121")
        a(f"s_lshl_b32 s62, {sW}, 20\ns_lshl_b32 s54, {sH}, 8\ns_add_u32 s62, s62, s54")
        def U(Ts):
            for T in Ts:
                a(f"s_add_u32 s54, s62, {(32*(T>>1) + 4*(T&1)) * 8192}")
                for kk in range(4):
                    r = 128 + 16 * T + 4 * kk
                    a(f"buffer_load_dwordx4 v[{r}:{r+3}], v121, {self.S(SRD_B)}, s54 offen offset:{64*kk} nt")
        U([0, 1])
        self.selectors()
        wreg = lambda t: f"a[{112+4*t}:{115+4*t}]"
        a("s_waitcnt vmcnt(41)"); U([2, 3, 4, 5])
        self.proj_mfma(list(range(0, 9)), 48, 20, 96, 112, wreg, True)
        a("s_waitcnt vmcnt(48)"); U([6, 7])
        self.proj_mfma(list(range(9, 18)), 48, 20, 96, 112, wreg, False)
        a("s_waitcnt vmcnt(47)")
        self.proj_mfma(list(range(18, 27)), 48, 20, 96, 112, wreg, False)
        a("s_waitcnt vmcnt(38)")
        self.proj_mfma(list(range(27, 36)), 48, 20, 96, 112, wreg, False)
        self.proj_store_partials(112, 5)
        self.operand_from_partials(5, 48, 96)
        self.stamp(1)
        a.c("P2: q_abs tiles -> v[48+4T..]")
        for T in range(8):
            a(f"s_waitcnt vmcnt({4*(7-T)})")
            for kk in range(4):
                c = "0" if kk == 0 else f"v[{48+4*T}:{51+4*T}]"
                r = 128 + 16 * T + 4 * kk
                a(f"v_mfma_f32_16x16x32_bf16 v[{48+4*T}:{51+4*T}], v[{r}:{r+3}], v[{96+4*kk}:{99+4*kk}], {c}")
        a(f"s_mov_b32 s96, {f2u(SCALE * LOG2E)}")
        a.c("q_abs store: lane (n,G): batch n>>2, c = 128w + 32P + 8G..+8")
        a("v_lshrrev_b32 v5, 2, v3\nv_lshlrev_b32 v5, 15, v5\nv_lshl_add_u32 v5, v4, 4, v5")
        a(f"s_lshl_b32 s54, {sH}, 10\ns_lshl_b32 s55, {sW}, 8\ns_add_u32 s54, s54, s55\ns_add_u32 s54, s54, {WS_QABS}")
        for r in range(32): a(f"v_mul_f32 v{48+r}, s96, v{48+r}")
        for r in range(16): a(f"v_cvt_pk_bf16_f32 v{80+r}, v{48+2*r}, v{49+2*r}")
        a("s_mov_b32 s56, 0x11111111\ns_mov_b32 s57, 0x11111111\ns_mov_b64 exec, s[56:57]")
        for P in range(4):
            a(f"buffer_store_dwordx4 v[{80+4*P}:{83+4*P}], v5, {self.S(SRD_WS)}, s54 offen offset:{64*P} sc1")
        a("s_mov_b64 exec, -1")
        a.c("c_kv DMA setup: b = wg>>3, s = wg&7; voffsets v[20:23]")
        a("v_lshlrev_b32 v5, 2, v4\nv_xor_b32 v5, v5, v3\nv_lshlrev_b32 v6, 10, v4")
        for i in range(4): a(f"v_xor_b32 v7, {i}, v5\nv_lshl_add_u32 v{20+i}, v7, 4, v6")
        a(f"s_lshl_b32 s58, s2, 19\ns_lshl_b32 s54, {sW}, 8\ns_add_u32 s58, s58, s54\ns_add_u32 s60, s58, {1<<19}")
        a(f"s_lshl_b32 s63, {sW}, 15\ns_mov_b32 s59, s63")
        for _ in range(3): self.ckv_dma()
        a("s_waitcnt vmcnt(24)\ns_barrier")
        self.signal(DBG_S1)
        self.stamp(2)
        self.wait_counter(f"v_mov_b32 v5, {DBG_S1}", 32)
        self.stamp(3)
        a.c("P3: q_abs fragments a[0:31]: lane (head=l&31, hh=l>>5)")
        a("v_and_b32 v24, 31, v1\nv_lshrrev_b32 v25, 5, v1\nv_lshlrev_b32 v5, 10, v24\nv_lshl_add_u32 v5, v25, 4, v5")
        a(f"s_lshr_b32 s54, s2, 3\ns_lshl_b32 s54, s54, 15\ns_lshl_b32 s55, {sW}, 8\ns_add_u32 s54, s54, s55\ns_add_u32 s54, s54, {WS_QABS}")
        for kk in range(8):
            a(f"buffer_load_dwordx4 a[{4*kk}:{4*kk+3}], v5, {self.S(SRD_WS)}, s54 offen offset:{32*kk} sc1")
        a.c("LDS address bases: v26 QK reads, v27 tr reads, v28 X write, v29 X read")
        a("v_and_b32 v5, 3, v24\nv_lshlrev_b32 v5, 2, v5\nv_bfe_u32 v6, v24, 2, 2\nv_or_b32 v5, v5, v6\nv_xor_b32 v5, v5, v25")
        a("v_lshlrev_b32 v26, 8, v24\nv_lshl_add_u32 v26, v5, 4, v26\nv_add_u32 v26, s63, v26")
        a("v_bfe_u32 v5, v1, 2, 2")
        a("v_lshl_add_u32 v6, v25, 2, v5\nv_lshlrev_b32 v27, 8, v6")
        a("v_and_b32 v6, 1, v1\nv_lshl_add_u32 v27, v6, 3, v27")
        a("v_bfe_u32 v6, v1, 4, 1\nv_lshlrev_b32 v6, 1, v6\nv_bfe_u32 v7, v1, 1, 1\nv_or_b32 v6, v6, v7\nv_xor_b32 v6, v6, v25")
        a("v_lshl_or_b32 v6, v5, 2, v6\nv_lshl_add_u32 v27, v6, 4, v27\nv_add_u32 v27, s63, v27")
        a(f"v_add_u32 v29, {LDS_X}, v2\ns_lshl_b32 s54, {sW}, 12\nv_add_u32 v28, s54, v29")
        for r in range(64): a(f"v_mov_b32 v{64+r}, 0")
        a("v_mov_b32 v216, 0xff800000\nv_mov_b32 v217, 0\ns_mov_b32 s62, 16\ns_mov_b32 s61, 0")
        a("s_waitcnt vmcnt(0)")
        a.label("L_bloop")
        a("s_waitcnt vmcnt(16)")
        self.ckv_dma()
        a("v_add_u32 v30, s61, v26\nv_add_u32 v31, s61, v27")
        for kk in range(8):
            if kk: a(f"v_xor_b32 v{32+kk}, {32*kk}, v30")
            a(f"ds_read_b128 a[{32+4*kk}:{35+4*kk}], v{32+kk if kk else 30}")
        for kk in range(8):
            a(f"s_waitcnt lgkmcnt({7-kk})")
            c = "0" if kk == 0 else "v[128:143]"
            a(f"v_mfma_f32_32x32x16_bf16 v[128:143], a[{32+4*kk}:{35+4*kk}], a[{4*kk}:{4*kk+3}], {c}")
        for T in range(4):
            for u in range(2):
                x = 64 * T + 32 * u
                if x: a(f"v_xor_b32 v{40+2*T+u}, {x}, v31")
                va = 40 + 2 * T + u if x else 31
                for t in range(2):
                    r = 64 + (T * 2 + t) * 4 + 2 * u
                    a(f"ds_read_b64_tr_b16 a[{r}:{r+1}], v{va} offset:{(16*t+8*u)*256}")
        for q in range(4): a(f"ds_write_b128 v28, v[{128+4*q}:{131+4*q}] offset:{1024*q}")
        a("s_waitcnt lgkmcnt(0)\ns_barrier")
        for w in range(4):
            for q in range(4):
                a(f"ds_read_b128 v[{144+16*w+4*q}:{147+16*w+4*q}], v29 offset:{4096*w+1024*q}")
        a("v_xor_b32 v28, 16384, v28\nv_xor_b32 v29, 16384, v29")
        a("s_add_u32 s61, s61, 8192\ns_and_b32 s61, s61, 0x7fff")
        a("s_waitcnt lgkmcnt(8)")
        for r in range(16): a(f"v_add_f32 v{144+r}, v{144+r}, v{160+r}")
        a("s_waitcnt lgkmcnt(0)")
        for r in range(16): a(f"v_add_f32 v{176+r}, v{176+r}, v{192+r}")
        for r in range(16): a(f"v_add_f32 v{144+r}, v{144+r}, v{176+r}")
        a("v_max3_f32 v218, v144, v145, v146\nv_max3_f32 v219, v147, v148, v149\nv_max3_f32 v220, v150, v151, v152\nv_max3_f32 v221, v153, v154, v155")
        a("v_max3_f32 v218, v218, v156, v157\nv_max3_f32 v219, v219, v158, v159\nv_max3_f32 v218, v218, v219, v220\nv_max_f32 v218, v218, v221")
        a("v_mov_b32 v219, v218\nv_permlane32_swap_b32 v218, v219\nv_max3_f32 v218, v218, v219, v216")
        a("v_sub_f32 v220, v216, v218\nv_exp_f32 v220, v220\nv_mov_b32 v216, v218")
        for r in range(16): a(f"v_sub_f32 v{144+r}, v{144+r}, v218")
        for r in range(16): a(f"v_exp_f32 v{144+r}, v{144+r}")
        a("v_mul_f32 v217, v217, v220")
        for r in range(64): a(f"v_mul_f32 v{64+r}, v{64+r}, v220")
        for r in range(8): a(f"v_cvt_pk_bf16_f32 v{208+r}, v{144+2*r}, v{145+2*r}")
        for t in range(2):
            for T in range(4):
                r = 64 + (T * 2 + t) * 4
                a(f"v_mfma_f32_32x32x16_bf16 v[{64+16*T}:{79+16*T}], a[{r}:{r+3}], v[{208+4*t}:{211+4*t}], v[{64+16*T}:{79+16*T}]")
        for r in range(8): a(f"v_add_f32 v{160+r}, v{144+2*r}, v{145+2*r}")
        for r in range(4): a(f"v_add_f32 v{160+r}, v{160+r}, v{164+r}")
        a("v_add_f32 v160, v160, v161\nv_add_f32 v162, v162, v163\nv_add_f32 v160, v160, v162\nv_add_f32 v217, v217, v160")
        a("s_sub_u32 s62, s62, 1\ns_cmp_lg_u32 s62, 0\ns_cbranch_scc1 L_bloop")
        self.stamp(4)
        a.c("P5: normalise, transpose through the wave's own ring region, publish")
        a("s_waitcnt vmcnt(0)")
        a("v_mov_b32 v219, v217\nv_permlane32_swap_b32 v217, v219\nv_add_f32 v217, v217, v219\nv_rcp_f32 v220, v217")
        a(f"v_mul_u32_u24 v5, 272, v24\nv_lshl_add_u32 v5, v25, 3, v5\nv_add_u32 v5, s63, v5")
        for r in range(64): a(f"v_mul_f32 v{64+r}, v{64+r}, v220")
        for r in range(32): a(f"v_cvt_pk_bf16_f32 v{128+r}, v{64+2*r}, v{65+2*r}")
        for k in range(16): a(f"ds_write_b64 v5, v[{128+2*k}:{129+2*k}] offset:{16*k}")
        a(f"v_mul_u32_u24 v6, 272, v4\nv_lshl_add_u32 v6, v3, 4, v6\nv_add_u32 v6, s63, v6")
        a("s_waitcnt lgkmcnt(0)")
        for k in range(8): a(f"ds_read_b128 v[{64+4*k}:{67+4*k}], v6 offset:{272*4*k}")
        a("v_lshlrev_b32 v7, 15, v4\nv_lshl_add_u32 v7, v3, 4, v7")
        a(f"s_lshl_b32 s54, s2, 10\ns_lshl_b32 s55, {sW}, 8\ns_add_u32 s54, s54, s55\ns_add_u32 s54, s54, {WS_BO}")
        for k in range(8):
            a(f"s_waitcnt lgkmcnt({7-k})")
            a(f"buffer_store_dwordx4 v[{64+4*k}:{67+4*k}], v7, {self.S(SRD_WS)}, s54 offen sc1")
            a(f"s_add_u32 s54, s54, {4*32768}")
        a(f"v_lshlrev_b32 v5, 8, v24\ns_lshl_b32 s54, s2, 3\ns_add_u32 s54, s54, {WS_BML}")
        a(f"buffer_store_dwordx2 v[216:217], v5, {self.S(SRD_WS)}, s54 offen sc1")
        a.c("w_uv loads -> a[112+4t]: row = 128w + 32g + t")
        self.srd(SRD_C, P_WUV, 512 * 8192)
        a(f"v_lshlrev_b32 v120, 18, v4\nv_lshl_add_u32 v120, v3, 4, v120")
        a(f"s_lshl_b32 s61, {sW}, 20\ns_lshl_b32 s54, {sH}, 8\ns_add_u32 s61, s61, s54")
        self.wq_loads(range(32), SRD_C, 'nt')
        a("s_waitcnt vmcnt(32)\ns_barrier")
        self.signal(DBG_S2)
        self.stamp(5)
        self.wait_counter(f"v_mov_b32 v5, {DBG_S2}", 32)
        self.stamp(6)
        a.c("P6: combine the 8 splits of (h, b=w)")
        a(f"s_lshl_b32 s54, {sH}, 2\ns_add_u32 s54, s54, {sW}\ns_lshl_b32 s55, s54, 6\ns_add_u32 s55, s55, {WS_BML}")
        a(f"s_lshl_b32 s54, s54, 13\ns_add_u32 s54, s54, {WS_BO}\ns_add_u32 s56, s54, 4096\nv_mov_b32 v5, 0")
        for k in range(4): a(f"buffer_load_dwordx4 v[{48+4*k}:{51+4*k}], v5, {self.S(SRD_WS)}, s55 offen offset:{16*k} sc1")
        for s in range(8):
            a(f"buffer_load_dwordx4 v[{16+4*s}:{19+4*s}], v2, {self.S(SRD_WS)}, s{54 if s < 4 else 56} offen offset:{1024*(s&3)} sc1")
        self.srd(SRD_B, P_BWO, 32 * 147456)
        self.oproj_addr()
        a("s_waitcnt vmcnt(12)")
        self.oproj_loads(SRD_B, [0, 1, 2])
        a("s_waitcnt vmcnt(56)")
        a("v_max3_f32 v64, v48, v50, v52\nv_max3_f32 v65, v54, v56, v58\nv_max3_f32 v64, v64, v60, v62\nv_max_f32 v64, v64, v65")
        for s in range(8): a(f"v_sub_f32 v{72+s}, v{48+2*s}, v64")
        for s in range(8): a(f"v_exp_f32 v{72+s}, v{72+s}")
        for s in range(8): a(f"v_mul_f32 v{72+s}, v{72+s}, v{49+2*s}")
        a("v_add_f32 v64, v72, v73\nv_add_f32 v65, v74, v75\nv_add_f32 v66, v76, v77\nv_add_f32 v67, v78, v79")
        a("v_add_f32 v64, v64, v65\nv_add_f32 v66, v66, v67\nv_add_f32 v64, v64, v66\nv_rcp_f32 v64, v64")
        for s in range(8): a(f"v_mul_f32 v{72+s}, v{72+s}, v64")
        a("s_waitcnt vmcnt(48)\ns_mov_b32 s98, 0xffff0000")
        for s in range(8):
            for q in range(4):
                a(f"v_lshlrev_b32 v82, 16, v{16+4*s+q}\nv_and_b32 v83, s98, v{16+4*s+q}")
                if s == 0: a(f"v_mul_f32 v{64+2*q}, v82, v72\nv_mul_f32 v{65+2*q}, v83, v72")
                else: a(f"v_fmac_f32 v{64+2*q}, v82, v{72+s}\nv_fmac_f32 v{65+2*q}, v83, v{72+s}")
        for q in range(4): a(f"v_cvt_pk_bf16_f32 v{84+q}, v{64+2*q}, v{65+2*q}")
        a(f"s_lshl_b32 s54, {sW}, 10\nv_add_u32 v5, s54, v2")
        a("ds_write_b128 v5, v[84:87]")
        a("s_waitcnt vmcnt(40)")
        self.oproj_loads(SRD_B, [3])
        a("s_waitcnt lgkmcnt(0)\ns_barrier")
        a.c("P7: ctx = O_lat @ w_uv")
        a(f"v_lshrrev_b32 v5, 3, v3\nv_lshlrev_b32 v5, 10, v5\nv_lshl_add_u32 v5, v4, 6, v5\ns_lshl_b32 s54, {sW}, 8\nv_add_u32 v5, s54, v5")
        for p in range(2):
            for k in range(4): a(f"ds_read_b128 v[{16+16*p+4*k}:{19+16*p+4*k}], v5 offset:{2048*p+16*k}")
        a("s_waitcnt lgkmcnt(0)")
        self.proj_mfma(list(range(32)), 16, 16, 48, 64, wreg, True)
        self.proj_store_partials(64, 5)
        self.operand_from_partials(5, 16, 48)
        self.stamp(7)
        a("s_waitcnt vmcnt(0)")
        self.oproj_transpose()
        self.oproj_compute_publish(1)
        self.stamp(8)
        a.c("A-side output projection weights")
        self.srd(SRD_B, P_WO, 32 * 147456)
        self.oproj_addr()
        self.oproj_loads(SRD_B, [0, 1, 2])
        a("s_waitcnt vmcnt(40)")
        self.oproj_loads(SRD_B, [3])
        a("s_waitcnt vmcnt(0)")
        self.oproj_transpose()
        self.stamp(9)
        self.final_reduce(1)
        self.stamp(10)
        self.wait_counter(f"s_lshl_b32 s54, {sH}, 2\nv_mov_b32 v5, s54", 7)
        a.c("P9: wait for the 7 partials of (h, b=w)")
        a(f"s_lshl_b32 s58, {sH}, 15\ns_lshl_b32 s54, {sW}, 10\ns_add_u32 s58, s58, s54")
        a("v_min_u32 v5, 6, v1\nv_lshlrev_b32 v5, 12, v5")
        light, heavy = a.newlabel('light'), a.newlabel('heavy')
        a.label(light)
        a(f"buffer_load_dword v6, v5, {self.S(SRD_WS)}, s58 offen offset:512 sc1")
        a(f"s_waitcnt vmcnt(0)\nv_cmp_ne_u32 vcc, -1, v6\ns_cbranch_vccnz {heavy}\ns_sleep 4\ns_sub_u32 s101, s101, 1\ns_cbranch_scc0 {light}\ns_mov_b32 s101, 0")
        a.label(heavy)
        for j in range(7):
            a(f"s_add_u32 s54, s58, {4096*j}")
            a(f"buffer_load_dwordx4 v[{16+4*j}:{19+4*j}], v2, {self.S(SRD_WS)}, s54 offen sc1")
        a("s_waitcnt vmcnt(0)")
        a("v_max3_u32 v224, v16, v17, v18")
        for k in range(19, 43, 2): a(f"v_max3_u32 v224, v224, v{k}, v{k+1}")
        a("v_max_u32 v224, v224, v43")
        ok = a.newlabel('heavyok')
        a(f"v_cmp_eq_u32 vcc, -1, v224\ns_cbranch_vccz {ok}\ns_sub_u32 s101, s101, 1\ns_cbranch_scc0 {heavy}\ns_mov_b32 s101, 0")
        a.label(ok)
        self.stamp(11)
        a.c("lanes>=32 hold (m, l): coefficients there, then swapped down")
        a(f"s_mov_b32 s97, {f2u(LOG2E)}")
        a("v_max3_f32 v224, v16, v20, v24\nv_max3_f32 v225, v28, v32, v36\nv_max3_f32 v224, v224, v225, v40")
        for j in range(7): a(f"v_sub_f32 v{232+j}, v{16+4*j}, v224")
        for j in range(7): a(f"v_mul_f32 v{232+j}, s97, v{232+j}")
        for j in range(7): a(f"v_exp_f32 v{232+j}, v{232+j}")
        a("v_mul_f32 v224, v232, v17\nv_mul_f32 v225, v233, v21")
        a("v_fmac_f32 v224, v234, v25\nv_fmac_f32 v225, v235, v29\nv_fmac_f32 v224, v236, v33\nv_fmac_f32 v225, v237, v37\nv_fmac_f32 v224, v238, v41")
        a("v_add_f32 v224, v224, v225\nv_rcp_f32 v224, v224")
        for j in range(7): a(f"v_mul_f32 v{232+j}, v{232+j}, v224")
        for j in range(7): a(f"v_permlane32_swap_b32 v{232+j}, v{240+j}")
        for r in range(4): a(f"v_mul_f32 v{224+r}, v{16+r}, v240")
        for j in range(1, 7):
            for r in range(4): a(f"v_fmac_f32 v{224+r}, v{16+4*j+r}, v{240+j}")
        a("v_cvt_pk_bf16_f32 v224, v224, v225\nv_cvt_pk_bf16_f32 v225, v226, v227")
        a.c("slot layout is linear in d: lane l<32 holds d = 4l..4l+3")
        a(f"s_lshl_b32 s54, {sW}, 9\nv_lshl_add_u32 v5, v1, 3, s54")
        a("ds_write_b64 v5, v[224:225]")
        a("v_lshrrev_b32 v5, 2, v3\nv_lshlrev_b32 v5, 9, v5\nv_lshl_add_u32 v5, v4, 4, v5")
        a("s_waitcnt lgkmcnt(0)\ns_barrier")
        for kk in range(4): a(f"ds_read_b128 v[{48+4*kk}:{51+4*kk}], v5 offset:{64*kk}")
        a("s_waitcnt lgkmcnt(0)")
        self.oproj_compute_publish(0)
        self.stamp(12)
        self.final_reduce(0)
        self.stamp(13)
        self.write_stamps()
        a("s_endpgm")
        a.label("L_roleB_end")

    def build(self, header):
        a = self.a
        a.raw(header)
        a.raw(f'.amdgcn_target "amdgcn-amd-amdhsa--gfx950"\n.text\n.globl {KN}_kernel\n.p2align 8\n.type {KN}_kernel,@function\n{KN}_kernel:')
        a("s_cmp_ge_u32 s2, 256\ns_cbranch_scc1 L_exit")
        a("s_load_dwordx16 s[4:19], s[0:1], 0\ns_load_dwordx8 s[20:27], s[0:1], 64\ns_load_dwordx4 s[28:31], s[0:1], 96")
        if self.stamps:
            for i in range(64, 96): a(f"s_mov_b32 s{i}, 0")
        self.stamp(0)
        a("v_lshrrev_b32 v2, 6, v0\nv_and_b32 v1, 63, v0\nv_readfirstlane_b32 s3, v2")
        a("v_and_b32 v3, 15, v0\nv_bfe_u32 v4, v0, 4, 2\nv_lshlrev_b32 v2, 4, v1")
        a("s_cmp_lt_u32 s2, 32\ns_cbranch_scc1 L_roleB")
        self.role_a()
        self.role_b()
        a.label("L_exit")
        a("s_endpgm")
        a.raw(f'''.section .rodata,"a"
.p2align 6
.amdhsa_kernel {KN}_kernel
  .amdhsa_next_free_vgpr 512
  .amdhsa_next_free_sgpr 102
  .amdhsa_accum_offset 256
  .amdhsa_group_segment_fixed_size 0
  .amdhsa_kernarg_size 112
  .amdhsa_user_sgpr_count 2
  .amdhsa_user_sgpr_kernarg_segment_ptr 1
  .amdhsa_system_sgpr_workgroup_id_x 1
.end_amdhsa_kernel''')
        return a.text()

def header(stamps):
    ref = open(os.path.join(os.path.dirname(os.path.abspath(__file__)), '..', KN + '.s.ref')).read().split('\n')
    top = [l for l in ref if l.startswith(';') and '@launch' not in l][:17]
    h = '\n'.join(top) + '\n; @launch grid=(256,1,1) block=(256,1,1) lds=163840'
    if stamps: h += '\n; groups=128'
    h += '\n; generated by gen/gen.py (hand-written generator)'
    return h

if __name__ == '__main__':
    import argparse
    ap = argparse.ArgumentParser()
    ap.add_argument('-o', default=os.path.join(os.path.dirname(os.path.abspath(__file__)), '..', KN + '.s'))
    ap.add_argument('--stamps', action='store_true')
    ap.add_argument('--wq', default='')
    args = ap.parse_args()
    g = Gen(stamps=args.stamps, wq_flags=args.wq)
    t = g.build(header(args.stamps))
    open(args.o, 'w').write(t)
    print(args.o, len(t), 'bytes; auto nops', g.a.nops)
```

```python
import re

_REG = re.compile(r'\b([vas])(\d+)\b|\b([vas])\[(\d+):(\d+)\]|\b(vcc|exec|m0|scc)(?:_lo|_hi)?\b')
TRANS = ('v_exp_f32', 'v_log_f32', 'v_rcp_f32', 'v_rsq_f32', 'v_sqrt_f32', 'v_sin_f32', 'v_cos_f32')

def regs_of(tok):
    out = []
    for m in _REG.finditer(tok):
        if m.group(1): out.append((m.group(1), int(m.group(2))))
        elif m.group(3): out += [(m.group(3), i) for i in range(int(m.group(4)), int(m.group(5)) + 1)]
        else: out.append((m.group(6), 0))
    return out

def split_ops(s):
    ops, depth, cur = [], 0, ''
    for ch in s:
        if ch in '[(': depth += 1
        if ch in '])': depth -= 1
        if ch == ',' and depth == 0:
            ops.append(cur.strip()); cur = ''
        else: cur += ch
    if cur.strip(): ops.append(cur.strip())
    return ops

class Ins:
    def __init__(self, text):
        self.text = text
        t = text.split(';')[0].strip()
        parts = t.split(None, 1)
        self.op = op = parts[0]
        rest = parts[1] if len(parts) > 1 else ''
        ops = split_ops(rest)
        self.dpp = ('_dpp' in op) or any(k in rest for k in ('quad_perm', 'row_ror', 'row_shr', 'row_shl', 'row_newbcast', 'row_bcast', 'row_mirror', 'row_half_mirror'))
        self.mfma = op.startswith('v_mfma')
        self.valu = op.startswith('v_') and not self.mfma
        self.salu = op.startswith('s_') and not op.startswith(('s_load', 's_buffer_load', 's_memrealtime', 's_memtime', 's_waitcnt', 's_nop', 's_barrier', 's_branch', 's_cbranch', 's_endpgm', 's_sleep', 's_setprio', 's_atomic'))
        self.vmem = op.startswith(('buffer_', 'global_', 'flat_'))
        self.ds = op.startswith('ds_')
        self.trans = any(op.startswith(x) for x in TRANS)
        self.dot = op.startswith('v_dot')
        self.perml = op.startswith('v_permlane')
        self.rdlane = op.startswith(('v_readlane', 'v_readfirstlane'))
        self.ldsdma = self.vmem and (re.search(r'\blds\b', rest) is not None or 'load_lds' in op)
        self.passes = 0
        if self.mfma:
            self.passes = 8 if '32x32x16' in op else 4 if '16x16x32' in op else 2 if '4x4x4' in op else None
            assert self.passes, op
        R = [regs_of(o.split()[0] if o and not o.startswith(('v[', 'a[', 's[')) and ' ' in o else o.split(' ')[0]) for o in ops]
        self.w, self.r, self.srcc, self.ab, self.sdata = [], [], [], [], []
        self.nop = 0
        if op == 's_nop':
            self.nop = int(ops[0], 0) + 1
        elif self.mfma:
            self.w = R[0]; self.ab = R[1] + R[2]; self.srcc = R[3]; self.r = self.ab + self.srcc
        elif self.valu:
            if self.perml:
                self.w = R[0] + R[1]; self.r = R[0] + R[1]
            elif op.startswith(('v_add_co', 'v_sub_co', 'v_addc_co', 'v_subb_co', 'v_mad_u64')):
                self.w = R[0] + R[1]; self.r = sum(R[2:], [])
            else:
                self.w = R[0]; self.r = sum(R[1:], [])
                if op.startswith(('v_fmac', 'v_dot2c', 'v_pk_fmac', 'v_writelane')): self.r += R[0]
                if op.startswith('v_cmpx'): self.w = self.w + [('exec', 0)]
        elif self.vmem:
            if 'store' in op:
                self.r = sum(R, [])
                data = R[0] if op.startswith('buffer_') else R[1]
                if 'x3' in op or 'x4' in op: self.sdata = data
            elif 'atomic' in op:
                self.r = sum(R, [])
                if 'sc0' in rest: self.w = R[0]
            elif self.ldsdma:
                self.r = sum(R, []) + [('m0', 0)]
            elif op.startswith(('buffer_inv', 'buffer_wbl2')):
                pass
            else:
                self.w = R[0]; self.r = sum(R[1:], [])
                if 'd16' in op: self.r += R[0]
        elif self.ds:
            if op.startswith(('ds_write', 'ds_add')): self.r = sum(R, [])
            else: self.w = R[0]; self.r = sum(R[1:], [])
        elif self.salu:
            if op.startswith('s_cmp'): self.r = sum(R, [])
            else:
                self.w = R[0] if R else []; self.r = sum(R[1:], [])
                if 'saveexec' in op: self.w = self.w + [('exec', 0)]
        elif op.startswith(('s_load', 's_memrealtime', 's_memtime')):
            self.w = R[0]; self.r = sum(R[1:], [])
        self.w = set(self.w); self.r = set(self.r); self.srcc = set(self.srcc); self.ab = set(self.ab); self.sdata = set(self.sdata)

def isv(r): return r[0] in 'va' and r[0] != 'vcc' and len(r[0]) == 1
def iss(r): return r[0] == 's' or r[0] == 'vcc'

def need(p, c):
    n = 0
    pw_v = {r for r in p.w if isv(r)}
    pw_s = {r for r in p.w if iss(r)}
    if p.valu:
        if c.valu and c.dpp and (pw_v & c.r): n = max(n, 2)
        if c.rdlane and (pw_v & c.r): n = max(n, 1)
        if c.perml and (pw_v & c.r): n = max(n, 2)
        if p.trans and (c.valu or c.mfma) and not c.trans and (pw_v & c.r): n = max(n, 1)
        if c.mfma and (pw_v & c.r): n = max(n, 2)
        if p.dot and (pw_v & (c.r | c.w)):
            if c.op == p.op and not (pw_v & set(list(c.r)) - set(regs_of(split_ops(c.text.split(';')[0].split(None, 1)[1])[-1].split(' ')[0]))): pass
            else: n = max(n, 3)
        if pw_s:
            if c.valu and (pw_s & c.r): n = max(n, 4 if c.rdlane or c.op.startswith('v_writelane') else 2)
            if c.vmem and (pw_s & c.r): n = max(n, 5)
            if c.salu and (pw_s & c.r): n = max(n, 1)
        if ('exec', 0) in p.w:
            if c.dpp: n = max(n, 5)
            if c.mfma or c.rdlane or c.perml: n = max(n, 4)
        if 'sdwa' in p.op or 'op_sel' in p.text:
            if c.valu and (pw_v & (c.r | c.w)): n = max(n, 1)
    if p.mfma:
        big = {2: 5, 4: 8, 8: 12}[p.passes]
        if c.mfma:
            if p.w & c.ab: n = max(n, big)
            if p.w & c.srcc:
                if p.w == c.srcc and p.passes == c.passes: n = max(n, 2 if p.passes == 2 else 0)
                else: n = max(n, {2: 4, 4: 6, 8: 10}[p.passes])
            elif p.w & c.w:
                n = max(n, big)
        elif (c.valu or c.vmem or c.ds) and (p.w & (c.r | c.w)): n = max(n, big)
        if c.valu and (p.srcc & c.w): n = max(n, {2: 1, 4: 3, 8: 7}[p.passes])
    if p.salu and ('m0', 0) in p.w and c.ldsdma: n = max(n, 1)
    if p.sdata and (p.sdata & c.w): n = max(n, 2)
    return n

class Asm:
    def __init__(self):
        self.lines = []
        self.hist = []
        self.nops = 0
        self.uid = 0
        self.vm = 0
        self.vm_done = 0
        self.vm_count = True
        self.vm_slack = 0
    def raw(self, s): self.lines.append(s)
    def c(self, s): self.lines.append('    ; ' + s)
    def label(self, name, clean=False):
        self.lines.append(name + ':')
    def newlabel(self, base):
        self.uid += 1
        return f'L_{base}_{self.uid}'
    def mark(self): return self.vm
    def wait_for(self, m):
        n = self.vm - m
        assert 0 <= n <= 63, n
        if m > self.vm_done:
            self(f's_waitcnt vmcnt({n})')
    def vm_reset(self, outstanding=0):
        self.vm = outstanding; self.vm_done = 0
    def settle(self, n=12):
        left = n
        while left > 0:
            k = min(left, 16); self(f's_nop {k-1}'); left -= k
    def __call__(self, text):
        for t in text.strip().split('\n'):
            t = t.strip()
            if not t or t.startswith(';'): continue
            if t.endswith(':'):
                self.lines.append(t); continue
            ghost = t.startswith('?')
            if ghost: t = t[1:]
            ins = Ins(t); ins.ghost = ghost
            if not ins.nop:
                dist = 0; req = 0
                for p in reversed(self.hist):
                    n = need(p, ins)
                    if n > dist: req = max(req, n - dist)
                    if not getattr(p, 'ghost', False): dist += p.nop if p.nop else 1
                    if dist >= 20: break
                if req:
                    self.nops += req
                    nop = Ins(f's_nop {req-1}'); nop.ghost = ghost
                    self.lines.append(f'    s_nop {req-1}')
                    self.hist.append(nop)
            self.lines.append('    ' + t)
            if ins.vmem and self.vm_count:
                self.vm += 1
                assert self.vm - self.vm_done + self.vm_slack <= 63, ('vmcnt overflow', t, len(self.lines))
            if ins.op == 's_waitcnt':
                mm = re.search(r'vmcnt\((\d+)\)', t)
                if mm and self.vm_count: self.vm_done = max(self.vm_done, self.vm - int(mm.group(1)))
            self.hist.append(ins)
            if len(self.hist) > 64: self.hist = self.hist[-32:]
    def text(self): return '\n'.join(self.lines) + '\n'
```

```python
import sys, os, math, struct
sys.path.insert(0, os.path.dirname(os.path.abspath(__file__)))
from asmlib import Asm

KN = "concat_heads__mha_block_cached__compressed_kv_cla__decode"
def f2u(x): return struct.unpack('<I', struct.pack('<f', x))[0]
LOG2E = 1.4426950408889634
SCALE = 128 ** -0.5
M24 = (1 << 32) // 24 + 1
M18 = (1 << 32) // 18 + 1

WS_APART, WS_QABS, WS_BO, WS_BML, WS_Y, WS_YPART = 0x800000, 0x100000, 0x200000, 0x300000, 0x400000, 0x80000
WS_QA, WS_CTR = 0x500000, 0x520000
WS_STAMP = 0x10000000
OOB_WS = 0x20000000
DBG_S1, DBG_S2 = 128, 192
LDS_X = 131072
P_AX, P_K, P_V, P_WQ, P_WO, P_BX, P_CKV, P_BWQ, P_WUK, P_WUV, P_BWO, P_OUT, P_DBG, P_WS = [4 + 2 * i for i in range(14)]
SRD_A, SRD_B, SRD_C, SRD_WS, SRD_D = 32, 36, 40, 44, 48
sW, sH, sJ = 's3', 's52', 's53'
NSH, NSD = 8, 24

def xs(T): return {36: 20, 18: 12}[T]

def mix(main, side, every, start=0):
    out, k = [], 0
    for i, m in enumerate(main):
        if i >= start and (i - start) % every == 0 and k < len(side):
            out.append(side[k]); k += 1
        out.append(m)
    return out + side[k:]

class Stream:
    def __init__(self, a, ahead):
        self.a, self.ahead, self.items, self.marks = a, ahead, [], []
    def add(self, texts):
        self.items += texts
        return len(self.items)
    def issue(self, upto):
        while len(self.marks) < min(upto, len(self.items)):
            self.a(self.items[len(self.marks)]); self.marks.append(self.a.mark())
    def need(self, n):
        self.issue(n)
        self.a.wait_for(self.marks[n - 1])
        self.issue(n + self.ahead)

class Gen:
    def __init__(self, stamps=False, wq_flags='', opts=None):
        self.a = Asm(); self.stamps = stamps; self.nst = 0; self.wq_flags = wq_flags
        self.o = opts or {}
        self.RING = self.o.get('ring', 2); self.NX = self.o.get('nx', 10); self.ST = 32
        self.QS = self.o.get('qs', 2)
    def srd(self, d, p, nbytes):
        self.a(f"s_mov_b32 s{d}, s{p}\ns_mov_b32 s{d+1}, s{p+1}\ns_mov_b32 s{d+2}, {nbytes}\ns_mov_b32 s{d+3}, 0x20000")
    def S(self, d): return f"s[{d}:{d+3}]"
    def stamp(self, i):
        if self.stamps: self.a(f"s_memrealtime s[{64+2*i}:{65+2*i}]")
    def write_stamps(self):
        if not self.stamps: return
        a = self.a
        a("s_waitcnt lgkmcnt(0)")
        a(f"s_lshl_b32 s54, s2, 2\ns_add_u32 s54, s54, {sW}\ns_lshl_b32 s54, s54, 7\ns_add_u32 s54, s54, {WS_STAMP}")
        a("v_mov_b32 v2, 0")
        for i in range(8):
            for k in range(4): a(f"v_mov_b32 v{4+k}, s{64+4*i+k}")
            a(f"buffer_store_dwordx4 v[4:7], v2, {self.S(SRD_WS)}, s54 offen offset:{16*i}")
            a("s_nop 1")

    def selectors(self):
        a = self.a
        a("v_and_b32 v5, 1, v3")
        a("v_cmp_eq_u32 vcc, 1, v5")
        a("v_mov_b32 v5, 0x0c0c0100\nv_mov_b32 v6, 0x01000c0c\nv_cndmask_b32 v5, v5, v6, vcc")
        a("v_mov_b32 v6, 0x0c0c0302\nv_mov_b32 v7, 0x03020c0c\nv_cndmask_b32 v6, v6, v7, vcc")
        a("v_bfe_u32 v7, v3, 1, 2")
        a("v_mov_b32 v16, 0x0c0c0c0c")
        for q in range(4):
            a(f"v_cmp_eq_u32 vcc, {q}, v7")
            a(f"v_cndmask_b32 v{8+2*q}, v16, v5, vcc\nv_cndmask_b32 v{9+2*q}, v16, v6, vcc")

    def proj_mfma(self, ts, act, actp, tmp, acc, wreg, first):
        a = self.a
        for t in ts:
            for p in range(2):
                tb = tmp + ((2 * t + p) & 3) * 4
                src = act + p * actp + (t >> 1)
                for q in range(4):
                    a(f"v_perm_b32 v{tb+q}, v{src}, v{src}, v{8+2*q+(t&1)}")
                c = "0" if (first and t == ts[0]) else f"v[{acc+4*p}:{acc+4*p+3}]"
                a(f"v_mfma_f32_16x16x32_bf16 v[{acc+4*p}:{acc+4*p+3}], v[{tb}:{tb+3}], {wreg(t)}, {c}")

    def proj_store_partials(self, acc, va, base=LDS_X):
        a = self.a
        a(f"v_lshrrev_b32 v{va}, 1, v4\nv_lshlrev_b32 v{va}, 9, v{va}")
        a(f"v_lshl_add_u32 v{va}, v3, 5, v{va}")
        a(f"v_and_b32 v{va+1}, 1, v4\nv_lshl_add_u32 v{va}, v{va+1}, 4, v{va}")
        a(f"s_lshl_b32 s54, {sW}, 11\ns_add_u32 s54, s54, {base}\nv_add_u32 v{va}, s54, v{va}")
        a(f"ds_write_b128 v{va}, v[{acc}:{acc+3}]\nds_write_b128 v{va}, v[{acc+4}:{acc+7}] offset:1024")
        a("s_waitcnt lgkmcnt(0)\ns_barrier")

    def sum4_pack(self, va, off, tmp, dst):
        a = self.a
        for w in range(4):
            a(f"ds_read_b128 v[{tmp+8*w}:{tmp+8*w+3}], v{va} offset:{off+2048*w}")
            a(f"ds_read_b128 v[{tmp+8*w+4}:{tmp+8*w+7}], v{va} offset:{off+2048*w+16}")
        a("s_waitcnt lgkmcnt(0)")
        for e in range(8):
            a(f"v_add_f32 v{tmp+e}, v{tmp+e}, v{tmp+8+e}\nv_add_f32 v{tmp+16+e}, v{tmp+16+e}, v{tmp+24+e}")
        for e in range(8): a(f"v_add_f32 v{tmp+e}, v{tmp+e}, v{tmp+16+e}")
        for q in range(4): a(f"v_cvt_pk_bf16_f32 v{dst+q}, v{tmp+2*q}, v{tmp+2*q+1}")

    def operand_from_partials(self, va, tmp, dst):
        a = self.a
        a(f"v_lshrrev_b32 v{va}, 2, v3\nv_lshlrev_b32 v{va}, 9, v{va}\nv_lshl_add_u32 v{va}, v4, 5, v{va}")
        a(f"v_add_u32 v{va}, {LDS_X}, v{va}")
        for kk in range(4): self.sum4_pack(va, kk * 128, tmp, dst + 4 * kk)

    def x_loads(self, srd, act, T=36, row0=0):
        a = self.a
        a(f"v_lshrrev_b32 v5, 3, v3\nv_mul_u32_u24 v5, 1152, v5\nv_mul_u32_u24 v6, {2*T}, v4\nv_add_u32 v5, v5, v6")
        a(f"s_mul_i32 s54, {sW}, {8*T}")
        if row0: a(f"s_add_u32 s54, s54, {2*row0}")
        for p in range(2):
            r = act + xs(T) * p
            for k in range(T // 8):
                a(f"buffer_load_dwordx4 v[{r+4*k}:{r+4*k+3}], v5, {self.S(srd)}, s54 offen offset:{2304*p+16*k}")
            k = T // 8
            if T == 36: a(f"buffer_load_dwordx2 v[{r+4*k}:{r+4*k+1}], v5, {self.S(srd)}, s54 offen offset:{2304*p+16*k}")
            else: a(f"buffer_load_dword v{r+4*k}, v5, {self.S(srd)}, s54 offen offset:{2304*p+16*k}")

    def code_prefetch(self, start, end, n, junk=122):
        a = self.a
        lab = a.newlabel('pc')
        a("s_getpc_b64 s[56:57]")
        a.label(lab)
        a(f"s_sub_u32 s56, s56, {lab}-{start}\ns_subb_u32 s57, s57, 0")
        a(f"v_lshlrev_b32 v5, 7, v0")
        for i in range(n):
            a(f"v_min_u32 v6, {end}-{start}-4, v5")
            a(f"global_load_dword v{junk}, v6, s[56:57]")
            if i + 1 < n: a("v_add_u32 v5, 32768, v5")

    def kreg(self, t): return 64 + 16 * t
    def a_loads(self, t, which):
        a = self.a
        if 'K' in which:
            for j in range(4):
                r = self.kreg(t) + 4 * j
                a(f"buffer_load_dwordx4 v[{r}:{r+3}], v2, {self.S(SRD_A)}, s60 offen offset:{1024*j} nt")
        if 'V' in which:
            for j in range(4):
                r = 16 * t + 4 * j
                a(f"buffer_load_dwordx4 a[{r}:{r+3}], v2, {self.S(SRD_B)}, s60 offen offset:{1024*j} nt")

    def a_body(self, t, ring):
        a = self.a
        R = self.RING
        D = "row_mask:0xf bank_mask"
        kb = self.kreg(t)
        noat, nocomp = self.o.get('noat'), self.o.get('nocomp')
        N = 8 if noat else 9
        def refill_k():
            vr = 48 + t
            if noat: a("s_mov_b32 s54, s16\ns_cmp_ge_u32 s58, s59\ns_cselect_b32 s55, 24, 0\ns_add_u32 s16, s16, s55")
            else: a(f"v_readfirstlane_b32 s54, v{vr}\nv_mov_b32 v{vr}, 1")
            a("s_cmp_ge_u32 s58, s61\ns_cselect_b32 s55, s57, s53")
            a("s_lshl_b32 s54, s54, 12\ns_add_u32 s60, s54, s99")
            a("s_cmp_lt_u32 s58, s59\ns_cselect_b32 s60, s58, s60\ns_cselect_b32 s54, 0, s54\ns_cselect_b64 s[6:7], s[8:9], s[10:11]")
            a(f"s_add_u32 s58, s58, {self.STEP}\ns_and_b32 s60, s60, s6\ns_or_b32 s60, s60, s7")
            a("s_cmp_lt_u32 s54, 0x100000\ns_cselect_b32 s60, s60, 0x8000000\ns_cselect_b32 s55, s55, s53\ns_addc_u32 s62, s62, -1")
            if not noat: a(f"buffer_atomic_add v{vr}, v18, {self.S(SRD_WS)}, s55 offen sc0")
            self.a_loads(t, 'K')
        if ring: a(f"s_waitcnt vmcnt({N*(R-1)+4})")
        if nocomp:
            if ring:
                refill_k(); a(f"s_waitcnt vmcnt({N*R-4})"); self.a_loads(t, 'V')
            return
        for e in range(4):
            for j in range(4):
                c = "0" if e == 0 else f"v{20+j}"
                a(f"v_dot2_f32_bf16 v{20+j}, v{kb+4*j+e}, v{4+e}, {c}")
        if ring: refill_k()
        a(f"v_add_f32_dpp v24, v20, v20 row_ror:8 {D}:0x3\nv_add_f32_dpp v25, v22, v22 row_ror:8 {D}:0x3")
        a(f"v_add_f32_dpp v24, v21, v21 row_ror:8 {D}:0xc\nv_add_f32_dpp v25, v23, v23 row_ror:8 {D}:0xc")
        a(f"v_add_f32_dpp v26, v24, v24 row_shl:4 {D}:0x5\nv_add_f32_dpp v26, v25, v25 row_shr:4 {D}:0xa")
        a(f"v_add_f32_dpp v26, v26, v26 quad_perm:[1,0,3,2] {D}:0xf")
        a(f"v_add_f32_dpp v26, v26, v26 quad_perm:[2,3,0,1] {D}:0xf")
        a.c("scores rounded as the reference does: bf16(bf16(q.k) * scale)")
        a("v_cvt_pk_bf16_f32 v26, v26, v26\nv_and_b32 v26, s98, v26\nv_mul_f32 v26, s96, v26")
        a("v_cvt_pk_bf16_f32 v26, v26, v26\nv_and_b32 v26, s98, v26")
        a.c("running max")
        a(f"v_max_f32_dpp v27, v26, v26 row_ror:4 {D}:0xf")
        a(f"v_max_f32_dpp v27, v27, v27 row_ror:8 {D}:0xf")
        a("v_mov_b32 v28, v27\nv_permlane16_swap_b32 v27, v28\nv_max_f32 v27, v27, v28")
        a("v_mov_b32 v28, v27\nv_permlane32_swap_b32 v27, v28\nv_max3_f32 v27, v27, v28, v16")
        a("v_sub_f32 v28, v16, v27\nv_sub_f32 v29, v26, v27\nv_mul_f32 v28, s97, v28\nv_mul_f32 v29, s97, v29")
        a("v_exp_f32 v28, v28\nv_exp_f32 v29, v29\nv_mov_b32 v16, v27")
        a("v_fma_f32 v17, v17, v28, v29\nv_cvt_pk_bf16_f32 v29, v29, v29")
        for r in range(4): a(f"v_mul_f32 v{12+r}, v{12+r}, v28")
        if ring: a(f"s_waitcnt vmcnt({N*R-4})")
        for j in range(4):
            bank = [0, 2, 1, 3][j]
            tb = 32 + 4 * j
            for q in range(4):
                a(f"v_and_b32_dpp v{tb+q}, v29, v{8+q} row_newbcast:{4*bank} {D}:0xf")
        for j in range(4):
            tb = 32 + 4 * j
            a(f"v_mfma_f32_16x16x32_bf16 v[12:15], v[{tb}:{tb+3}], a[{16*t+4*j}:{16*t+4*j+3}], v[12:15]")
        if ring: self.a_loads(t, 'V')

    def wq_loads(self, ts, srd, flags, base=112):
        a = self.a
        for t in ts:
            a(f"buffer_load_dwordx4 a[{base+4*t}:{base+3+4*t}], v120, {self.S(srd)}, s61 offen {flags}")
            a("s_add_u32 s61, s61, 8192")

    def wq_addr(self, T=36, row0=0):
        a = self.a
        a(f"v_mul_u32_u24 v120, {T*8192}, v4\nv_lshl_add_u32 v120, v3, 4, v120")
        a(f"s_mul_i32 s61, {sW}, {4*T*8192}\ns_lshl_b32 s54, {sH}, 8\ns_add_u32 s61, s61, s54")
        if row0: a(f"s_add_u32 s61, s61, {row0*8192}")

    def shared_sel(self, d, g):
        m = self.o.get('dsel', 1)
        if m == 0: self.a(f"s_mov_b32 {d}, 1")
        elif m == 1: self.a(f"s_add_u32 {d}, {g}, {sW}\ns_and_b32 {d}, {d}, 3")
        elif m == 2: self.a(f"s_mov_b32 {d}, {sW}")
        elif m == 3: self.a(f"s_lshr_b32 {d}, {g}, 1\ns_add_u32 {d}, {d}, {sW}\ns_and_b32 {d}, {d}, 3")
    def is_shared(self):
        self.a(f"s_lshr_b32 s55, {sH}, 2")
        self.shared_sel("s55", "s55")
        self.a(f"s_and_b32 s54, {sH}, 3\ns_cmp_eq_u32 s54, s55")
    def a_pack(self, d, ml):
        a = self.a
        D = "row_mask:0xf bank_mask"
        a(f"v_add_f32_dpp v17, v17, v17 row_ror:4 {D}:0xf")
        a(f"v_add_f32_dpp v17, v17, v17 row_ror:8 {D}:0xf")
        a("v_mov_b32 v28, v17\nv_permlane16_swap_b32 v17, v28\nv_add_f32 v17, v17, v28")
        a(f"v_mov_b32 v28, v17\nv_permlane32_swap_b32 v17, v28\nv_add_f32 v{ml+1}, v17, v28")
        if ml != 16: a(f"v_mov_b32 v{ml}, v16")
        a(f"v_cvt_pk_bf16_f32 v{d}, v12, v13\nv_cvt_pk_bf16_f32 v{d+1}, v14, v15")
    def a_reset(self):
        for r in range(4): self.a(f"v_mov_b32 v{12+r}, 0")
        self.a("v_mov_b32 v16, 0xff800000\nv_mov_b32 v17, 0")
    def a_take_q(self, tag, so):
        a = self.a
        a.label(f"L_aq{tag}")
        a(f"v_max3_u32 v20, v60, v61, v62\nv_max_u32 v20, v20, v63\nv_cmp_eq_u32 vcc, -1, v20\ns_cbranch_vccz L_aq{tag}_ok")
        c = a.vm_count; a.vm_count = False
        a(f"?buffer_load_dwordx4 v[60:63], v59, {self.S(SRD_WS)}, {so} offen sc1\n?s_waitcnt vmcnt(0)")
        a.vm_count = c
        a(f"?s_sub_u32 s101, s101, 1\n?s_cbranch_scc0 L_aq{tag}\n?s_mov_b32 s101, 0")
        a.label(f"L_aq{tag}_ok")
        for r in range(4): a(f"v_mov_b32 v{20+r}, v{60+r}")
        for r in range(4): a(f"v_permlane16_swap_b32 v{60+r}, v{20+r}")
        for r in range(4): a(f"v_add_f32 v{60+r}, v{60+r}, v{20+r}")
        a("v_cvt_pk_bf16_f32 v4, v60, v61\nv_cvt_pk_bf16_f32 v5, v62, v63\nv_mov_b32 v6, v4\nv_mov_b32 v7, v5")
        a("v_permlane32_swap_b32 v4, v6\nv_permlane32_swap_b32 v5, v7")

    def role_a(self):
        a = self.a
        R, NX, ST = self.RING, self.NX, self.ST
        assert R == 2 and R + NX <= 12 and ST >= NX + 2 * R and (ST - NX) % R == 0
        il = self.o.get('il', 1)
        STEP = self.STEP = 32768 if il else 4096
        a.label("L_roleA")
        if self.o.get('noA'): a("s_endpgm")
        a.vm_reset()
        a.c("24 workgroups per group of 4 heads: 8 each own a fixed eighth of a home head, then all share head 4g+1 (s52 home, s96 shared, s97 slot)")
        a(f"s_sub_u32 s54, s2, 64\ns_mul_hi_u32 s96, s54, {M24}\ns_mul_i32 s56, s96, 24\ns_sub_u32 s97, s54, s56")
        self.shared_sel("s56", "s96")
        a(f"s_lshr_b32 s55, s97, 3\ns_and_b32 {sJ}, s97, 7\ns_lshl_b32 s96, s96, 2\ns_add_u32 s55, s55, s56\ns_add_u32 s55, s55, 1\ns_and_b32 s55, s55, 3")
        a(f"s_add_u32 {sH}, s96, s55\ns_add_u32 s96, s96, s56")
        a.c("s58 next static offset, s59 static end, s61 atomic threshold, s99 rotation of the shared pool, s100 base of the static part")
        a(f"s_lshl_b32 s100, {sW}, 25\ns_lshl_b32 s55, {sH}, 20\ns_add_u32 s100, s100, s55\ns_lshl_b32 s55, {sJ}, {12 if il else 17}\ns_add_u32 s100, s100, s55")
        if il: a(f"s_lshl_b32 s58, {sH}, 2\ns_add_u32 s58, s58, {sW}\ns_mul_i32 s58, s58, {self.o.get('rot', 5)*STEP}")
        else: a(f"s_lshl_b32 s58, s54, 2\ns_add_u32 s58, s58, {sW}\ns_mul_i32 s58, s58, {self.o.get('rot', 5)*STEP}")
        a(f"s_add_u32 s59, s58, {ST*STEP}\ns_sub_u32 s61, s59, {R*STEP}")
        a(f"s_and_b32 s99, s96, 28\ns_add_u32 s99, s99, {sW}\ns_mul_i32 s99, s99, {self.o.get('rotd', 37)*4096}")
        a(f"s_mov_b32 s63, {sJ}")
        if not self.o.get('nopf'): self.code_prefetch("L_roleA", "L_roleA_end", 1, junk=56)
        a(f"s_mov_b32 s53, {OOB_WS}\nv_mov_b32 v18, s53\nv_cmp_eq_u32 vcc, 0, v1\nv_cndmask_b32 v18, v18, v1, vcc")
        a("s_waitcnt lgkmcnt(0)")
        self.srd(SRD_A, P_K, 0x8000000); self.srd(SRD_B, P_V, 0x8000000); self.srd(SRD_WS, P_WS, 0x20000000)
        SM = 0xf8000 if il else 0x1f000
        marks = []
        def T(t, ring):
            while a.vm - a.vm_done + 9 > 63:
                a.wait_for([m for m in marks if m > a.vm_done][0])
            if ring and not self.o.get('noat'): a(f"buffer_atomic_add v{48+t}, v18, {self.S(SRD_WS)}, s53 offen sc0")
            a(f"s_and_b32 s60, s58, {SM}\ns_or_b32 s60, s60, s100\ns_add_u32 s58, s58, {STEP}")
            self.a_loads(t, 'KV')
            marks.append(a.mark())
        order = [(R + i, False) for i in range(NX)] + [(i, True) for i in range(R)]
        FP, GP = self.o.get('fpos', 6), self.o.get('gpos', 9)
        for k, (t, ring) in enumerate(order[:FP]):
            T(t, ring)
            if k in (1, 3): self.stamp(11 + k // 2)
        self.stamp(8)
        a(f"s_lshl_b32 s54, {sH}, 2\ns_lshl_b32 s55, s96, 2\nv_mov_b32 v58, s54\nv_mov_b32 v57, s55\nv_cndmask_b32 v58, v58, v57, vcc")
        a.c("cached reads of monotonic flags, off the vector path; the slow path re-reads coherently")
        a(f"s_load_dword s18, s[{P_DBG}:{P_DBG+1}], s54\ns_load_dword s19, s[{P_DBG}:{P_DBG+1}], s55")
        for t, ring in order[FP:GP]: T(t, ring)
        a.c("setup while waiting: PV masks v[8:11], acc v[12:15], m v16, l v17, q address v59, store address v3")
        a("v_and_b32 v5, 1, v3\nv_cmp_eq_u32 vcc, 1, v5\nv_mov_b32 v5, 0xffff\nv_mov_b32 v6, 0xffff0000\nv_cndmask_b32 v5, v5, v6, vcc")
        a("v_lshrrev_b32 v6, 1, v3")
        for q in range(4):
            a(f"v_cmp_eq_u32 vcc, {q}, v6\nv_cndmask_b32 v{8+q}, 0, v5, vcc")
        self.a_reset()
        a("v_lshrrev_b32 v5, 1, v4\nv_lshlrev_b32 v59, 5, v3\nv_lshl_add_u32 v59, v5, 4, v59")
        a("v_and_b32 v5, 1, v4\nv_lshl_add_u32 v59, v5, 11, v59")
        a.c("final store: row 0 home O, row 1 shared O, lane 32 / 48 their (m, l); pool (h, b) at 8 KB stride: slots of 256 B, (m, l) from 6144")
        a(f"s_lshl_b32 s54, {sH}, 2\ns_add_u32 s54, s54, {sW}\ns_lshl_b32 s54, s54, 13\ns_lshl_b32 s55, s96, 2\ns_add_u32 s55, s55, {sW}\ns_lshl_b32 s55, s55, 13")
        a("v_cmp_eq_u32 vcc, 1, v5\nv_mov_b32 v6, s54\nv_mov_b32 v7, s55\nv_cndmask_b32 v6, v6, v7, vcc")
        a("v_mov_b32 v20, s63\nv_mov_b32 v7, s97\nv_cndmask_b32 v7, v20, v7, vcc")
        a("v_lshl_add_u32 v20, v7, 4, v3\nv_lshl_add_u32 v20, v20, 4, v6")
        a("v_lshl_add_u32 v21, v7, 4, v6\nv_add_u32 v21, 6144, v21\nv_mov_b32 v7, s53\nv_cmp_eq_u32 vcc, 0, v3\nv_cndmask_b32 v21, v7, v21, vcc")
        a("v_cmp_gt_u32 vcc, 32, v1\nv_cndmask_b32 v3, v21, v20, vcc")
        a.c("s[8:9] / s[10:11]: (mask, base) of the static / shared tiles; s12 q2 address, s13 second slot, s14 next event, s15 switch point")
        a(f"s_mov_b32 s8, {SM}\ns_mov_b32 s9, s100\ns_mov_b32 s10, 0xff000\ns_lshl_b32 s11, {sW}, 25\ns_lshl_b32 s54, s96, 20\ns_add_u32 s11, s11, s54")
        a(f"s_lshl_b32 s57, s96, 2\ns_add_u32 s57, s57, {sW}\ns_lshl_b32 s57, s57, 7\ns_add_u32 s57, s57, {WS_CTR}")
        a(f"s_lshl_b32 s54, {sW}, 9\ns_add_u32 s54, s54, {WS_QA}\ns_lshl_b32 s56, {sH}, 12\ns_add_u32 s56, s56, s54\ns_lshl_b32 s12, s96, 12\ns_add_u32 s12, s12, s54")
        a("s_mov_b32 s13, 0")
        if self.o.get('noat'): a("s_mov_b32 s16, s97")
        a(f"s_add_u32 s15, s59, {R*STEP}\ns_sub_u32 s14, s15, {2*R*STEP}")
        a(f"s_mov_b32 s96, {f2u(SCALE)}\ns_mov_b32 s97, {f2u(LOG2E)}\ns_mov_b32 s98, 0xffff0000")
        a(f"s_mov_b32 s62, {R}\ns_mov_b32 s101, " + str(self.o.get("spin", 100000)))
        self.stamp(9)
        a("s_waitcnt lgkmcnt(0)")
        self.stamp(1)
        if not self.o.get('noflag'): a("s_min_u32 s18, s18, s19\ns_cmp_lt_u32 s18, 2\ns_cbranch_scc1 L_aflag")
        a.label("L_aflag_ok")
        if not self.o.get('noq'): a(f"buffer_load_dwordx4 v[60:63], v59, {self.S(SRD_WS)}, s56 offen sc1")
        mG = a.mark()
        for t, ring in order[GP:]: T(t, ring)
        self.stamp(10)
        a.wait_for(mG)
        self.stamp(2)
        if self.o.get('noq'):
            for r in range(4): a(f"v_mov_b32 v{60+r}, 0")
        self.a_take_q(1, "s56")
        a("s_mov_b32 s56, 1")
        self.stamp(3)
        a.vm_count = False
        ext = [[] for _ in range(R)]
        for i in range(NX): ext[i * R // NX].append(R + i)
        last_ext = max([s for s in range(R) if ext[s]] + [-1])
        a.label("L_aloop")
        for s in range(R):
            self.a_body(s, True)
            a("s_cmp_eq_u32 s62, 0\ns_cbranch_scc1 L_adone")
            if ext[s]:
                a(f"s_cmp_lg_u32 s56, 0\ns_cbranch_scc1 L_aext{s}")
                a.label(f"L_aback{s}")
        a("s_cmp_lg_u32 s58, s14\ns_cbranch_scc1 L_aloop")
        a.c("events: fetch q of the shared head; later publish the home partial and switch over")
        a("s_cmp_eq_u32 s14, s15\ns_cbranch_scc1 L_aswitch")
        if not self.o.get('noq'): a(f"buffer_load_dwordx4 v[60:63], v59, {self.S(SRD_WS)}, s12 offen sc1")
        a("s_mov_b32 s14, s15\ns_branch L_aloop")
        a.label("L_aswitch")
        a.settle()
        self.a_pack(52, 50)
        self.a_reset()
        a("s_mov_b32 s13, 1\ns_cmp_eq_u32 s62, 0\ns_cbranch_scc1 L_adone")
        self.a_take_q(2, "s12")
        self.stamp(7)
        a("s_branch L_aloop")
        for s in range(R):
            if not ext[s]: continue
            a.label(f"L_aext{s}")
            for t in ext[s]: self.a_body(t, False)
            if s == last_ext: a("s_mov_b32 s56, 0")
            a(f"s_branch L_aback{s}")
        a.c("slow path: flags not there yet")
        a.label("L_aflag")
        a(f"s_sleep 2\nglobal_load_dword v57, v58, s[{P_DBG}:{P_DBG+1}] sc1\ns_waitcnt vmcnt(0)")
        a("v_cmp_gt_u32 vcc, 2, v57\ns_cbranch_vccz L_aflag_ok\ns_sub_u32 s101, s101, 1\ns_cbranch_scc0 L_aflag\ns_mov_b32 s101, 0\ns_branch L_aflag_ok")
        a.label("L_adone")
        a("s_cmp_eq_u32 s13, 0\ns_cbranch_scc1 L_aswitch")
        self.stamp(4)
        self.a_pack(54, 16)
        a("v_cmp_gt_u32 vcc, 48, v1\nv_cndmask_b32 v16, v16, v50, vcc\nv_cndmask_b32 v17, v17, v51, vcc")
        a("v_permlane16_swap_b32 v52, v54\nv_permlane16_swap_b32 v53, v55\nv_cmp_gt_u32 vcc, 32, v1")
        for r in range(4): a(f"v_cndmask_b32 v{52+r}, v{16+(r&1)}, v{52+r}, vcc")
        for r in range(4): a(f"v_min_u32 v{52+r}, -2, v{52+r}")
        a(f"s_mov_b32 s54, {WS_APART}\nbuffer_store_dwordx4 v[52:55], v3, {self.S(SRD_WS)}, s54 offen sc1")
        if self.stamps: a(f"s_sub_u32 s76, s58, s59\ns_lshr_b32 s76, s76, {15 if il else 12}\ns_mul_i32 s76, s76, 10\ns_add_u32 s76, s76, s64\ns_mov_b32 s77, s65")
        self.stamp(5)
        self.write_stamps()
        a("s_endpgm")
        a.label("L_roleA_end")
        a.vm_count = True

    def signal(self, off):
        a = self.a
        lab = a.newlabel('nosig')
        a(f"s_cmp_lg_u32 {sW}, 0\ns_cbranch_scc1 {lab}")
        if off is None: a(f"s_lshl_b32 s54, {sH}, 2\nv_mov_b32 v5, s54")
        else: a(f"v_mov_b32 v5, {off}")
        a("v_mov_b32 v6, 1\ns_mov_b64 exec, 1")
        a.vm_count = False
        a(f"global_atomic_add v5, v6, s[{P_DBG}:{P_DBG+1}]")
        a.vm_count = True
        a("s_mov_b64 exec, -1")
        a.label(lab)

    def wait_counter(self, voff_setup, target):
        a = self.a
        lab, done = a.newlabel('poll'), a.newlabel('polled')
        a(f"s_cmp_lg_u32 {sW}, 0\ns_cbranch_scc1 {done}")
        a(voff_setup)
        a.vm_count = False
        a.label(lab)
        a(f"global_load_dword v6, v5, s[{P_DBG}:{P_DBG+1}] sc1")
        a("s_waitcnt vmcnt(0)")
        a(f"v_cmp_le_u32 vcc, {target}, v6")
        a(f"s_cbranch_vccnz {done}\ns_sleep 2\ns_sub_u32 s101, s101, 1\ns_cbranch_scc0 {lab}\ns_mov_b32 s101, 0")
        a.label(done)
        a.vm_count = True
        a("s_barrier")

    def flags_issue(self, va, vd):
        self.a(f"v_and_b32 v{va}, 31, v1\nv_lshlrev_b32 v{va}, 2, v{va}\nglobal_load_dword v{vd}, v{va}, s[{P_DBG}:{P_DBG+1}] sc1")
    def flags_check(self, va, vd):
        a = self.a
        lab, done = a.newlabel('flags'), a.newlabel('flagsok')
        a.label(lab)
        a(f"v_cmp_gt_u32 vcc, 2, v{vd}\ns_cbranch_vccz {done}\ns_sleep 2")
        a(f"global_load_dword v{vd}, v{va}, s[{P_DBG}:{P_DBG+1}] sc1\ns_waitcnt vmcnt(0)")
        a(f"s_sub_u32 s101, s101, 1\ns_cbranch_scc0 {lab}\ns_mov_b32 s101, 0")
        a.label(done)
    def masked_poll(self, loads, tmp):
        a = self.a
        lab, ok = a.newlabel('mpoll'), a.newlabel('mpollok')
        n = len(loads)
        for j in range(n): a(f"s_mov_b64 s[{4+2*j}:{5+2*j}], -1")
        a.label(lab)
        for j, (t, r) in enumerate(loads): a(f"s_mov_b64 exec, s[{4+2*j}:{5+2*j}]\n" + t)
        a("s_mov_b64 exec, -1\ns_waitcnt vmcnt(0)")
        for j, (t, r) in enumerate(loads): a(f"v_max3_u32 v{tmp+j}, v{r}, v{r+1}, v{r+2}")
        for j, (t, r) in enumerate(loads): a(f"v_max_u32 v{tmp+j}, v{tmp+j}, v{r+3}")
        for j, (t, r) in enumerate(loads): a(f"v_cmp_eq_u32 s[{4+2*j}:{5+2*j}], -1, v{tmp+j}")
        a("s_or_b64 vcc, s[4:5], s[6:7]")
        for j in range(2, n): a(f"s_or_b64 vcc, vcc, s[{4+2*j}:{5+2*j}]")
        a(f"s_cbranch_scc0 {ok}\ns_sub_u32 s101, s101, 1\ns_cbranch_scc0 {lab}\ns_mov_b32 s101, 0")
        a.label(ok)
    def umax(self, dst, regs, t2):
        a = self.a
        h = len(regs) // 2
        chains = [(dst, list(regs[:h])), (t2, list(regs[h:]))]
        for d, r in chains:
            a(f"v_max3_u32 v{d}, v{r[0]}, v{r[1]}, v{r[2]}"); del r[:3]
        while any(len(r) >= 2 for _, r in chains):
            for d, r in chains:
                if len(r) >= 2: a(f"v_max3_u32 v{d}, v{d}, v{r[0]}, v{r[1]}"); del r[:2]
        left = chains[0][1] + chains[1][1]
        if len(left) == 2: a(f"v_max3_u32 v{dst}, v{dst}, v{left[0]}, v{left[1]}"); left = []
        if left: a(f"v_max3_u32 v{dst}, v{dst}, v{t2}, v{left[0]}")
        else: a(f"v_max_u32 v{dst}, v{dst}, v{t2}")
    def qabs_store(self, r0):
        a = self.a
        a.c("q_abs store: lane (n,G): batch n>>2, c = 128w + 32(n&3) + 8G..+8")
        a("v_lshrrev_b32 v5, 2, v3\nv_lshlrev_b32 v5, 15, v5\nv_lshl_add_u32 v5, v4, 4, v5\nv_and_b32 v6, 3, v3\nv_lshl_add_u32 v5, v6, 6, v5")
        a(f"s_lshl_b32 s54, {sH}, 10\ns_lshl_b32 s55, {sW}, 8\ns_add_u32 s54, s54, s55\ns_add_u32 s54, s54, {WS_QABS}")
        a(f"buffer_store_dwordx4 v[{r0}:{r0+3}], v5, {self.S(SRD_WS)}, s54 offen sc1")
    def part_addr(self, n):
        a = self.a
        a(f"s_lshl_b32 s58, {sH}, 2\ns_add_u32 s58, s58, {sW}\ns_lshl_b32 s58, s58, 13\ns_add_u32 s58, s58, {WS_APART}\ns_add_u32 s59, s58, 4096")
        a(f"v_min_u32 v6, {n//4-1}, v3\nv_lshl_add_u32 v6, v6, 2, v4\nv_lshlrev_b32 v6, 4, v6")
    def part_io(self, k): return f"v2, {self.S(SRD_WS)}, s{58 + k // 4} offen offset:{1024*(k&3)} sc1"
    def combine(self, n):
        a = self.a
        D = "row_mask:0xf bank_mask:0xf"
        K = n // 4
        self.part_addr(n)
        light, heavy = a.newlabel('light'), a.newlabel('heavy')
        a.label(light)
        a(f"buffer_load_dword v236, v6, {self.S(SRD_WS)}, s59 offen offset:2048 sc1")
        a(f"s_waitcnt vmcnt(0)\nv_cmp_ne_u32 vcc, -1, v236\ns_bcnt1_i32_b64 s54, vcc\ns_cmp_ge_u32 s54, {self.o.get('lt', 24)}")
        a(f"s_cbranch_scc1 {heavy}\ns_sleep 2\ns_sub_u32 s101, s101, 1\ns_cbranch_scc0 {light}\ns_mov_b32 s101, 0")
        a.label(heavy)
        loads = [(f"buffer_load_dwordx4 v[232:235], v6, {self.S(SRD_WS)}, s59 offen offset:2048 sc1", 232)]
        loads += [(f"buffer_load_dwordx4 v[{16+4*k}:{19+4*k}], " + self.part_io(k), 16 + 4 * k) for k in range(K)]
        self.masked_poll(loads, 236)
        self.stamp(7)
        def allred(op, r):
            o = [f"{op}_dpp v{r}, v{r}, v{r} row_ror:{sh} {D}" for sh in (1, 2, 4, 8)]
            for p in (16, 32): o += [f"v_mov_b32 v236, v{r}", f"v_permlane{p}_swap_b32 v{r}, v236", f"{op} v{r}, v{r}, v236"]
            return o
        co = [f"v_cmp_gt_u32 vcc, {K}, v3", "v_cndmask_b32 v233, 0, v233, vcc"]
        co += allred("v_max_f32", 234)
        co += ["v_sub_f32 v232, v232, v234", "v_mul_f32 v232, s97, v232", "v_exp_f32 v232, v232", "v_mul_f32 v233, v233, v232"]
        un = []
        for k in range(K):
            for q in range(4): un += [f"v_lshlrev_b32 v{40+4*k+q}, 16, v{16+4*k+q}", f"v_and_b32 v{16+4*k+q}, s98, v{16+4*k+q}"]
        for t in mix(un, co, 3 if K > 2 else 1): a(t)
        fm = []
        for k in range(K):
            op = "v_mul_f32_dpp" if k == 0 else "v_fmac_f32_dpp"
            for q in range(4):
                fm += [f"{op} v{224+2*q}, v232, v{40+4*k+q} row_newbcast:{k} {D}", f"{op} v{225+2*q}, v232, v{16+4*k+q} row_newbcast:{k} {D}"]
        for t in mix(fm, allred("v_add_f32", 233) + ["v_rcp_f32 v233, v233"], 3 if K > 2 else 1): a(t)
        for e in range(4): a(f"v_permlane32_swap_b32 v{224+e}, v{228+e}")
        for e in range(4): a(f"v_add_f32 v{224+e}, v{224+e}, v{228+e}")
        for e in range(2): a(f"v_permlane16_swap_b32 v{224+e}, v{226+e}")
        for e in range(2): a(f"v_add_f32 v{224+e}, v{224+e}, v{226+e}")
        for e in range(2): a(f"v_mul_f32 v{224+e}, v{224+e}, v233")

    def y_addr(self):
        a = self.a
        a(f"v_mul_u32_u24 v7, {18*4096}, v4")
        a("v_lshrrev_b32 v5, 3, v3\nv_lshl_add_u32 v6, v5, 13, v7\nv_and_b32 v5, 7, v3\nv_lshl_add_u32 v6, v5, 4, v6")
        a(f"v_lshl_add_u32 v7, v3, 3, v7\nv_add_u32 v7, {16*4096}, v7")
    def y_soff(self, part):
        a = self.a
        a(f"s_lshl_b32 s56, {sH}, 7\ns_add_u32 s56, s56, {WS_Y + part * WS_YPART}")
        a(f"s_lshl_b32 s54, {sW}, 14\ns_add_u32 s54, s54, s56\ns_add_u32 s55, s54, 4096")
        a(f"s_and_b32 s57, {sW}, 1\ns_lshl_b32 s57, s57, 12\ns_add_u32 s56, s56, s57")
    def y_store(self, r0, r1, rx):
        a = self.a
        a(f"buffer_store_dwordx4 v[{r0}:{r0+3}], v6, {self.S(SRD_WS)}, s54 offen sc1")
        a(f"buffer_store_dwordx4 v[{r1}:{r1+3}], v6, {self.S(SRD_WS)}, s55 offen sc1")
        a(f"buffer_store_dwordx2 v[{rx}:{rx+1}], v7, {self.S(SRD_WS)}, s56 offen sc1")

    def oproj_list(self, srd, f='v', va=80):
        main, extra = [], []
        for rb in range(4):
            for e in range(8):
                r = 96 + 32 * rb + 4 * e
                adv = {3: 4608, 7: 36864 - 4608}.get(e)
                main.append(f"buffer_load_dwordx4 {f}[{r}:{r+3}], v{va}, {self.S(srd)}, s99 offen offset:{1152*(e&3)} nt" + (f"\ns_add_u32 s99, s99, {adv}" if adv else ""))
                extra.append(f"buffer_load_dword {f}{224+8*rb+e}, v{va+1}, {self.S(srd)}, s100 offen offset:{1152*(e&3)} nt" + (f"\ns_add_u32 s100, s100, {adv}" if adv else ""))
        return main, extra
    def oproj_addr(self, va=80):
        a = self.a
        a(f"v_mul_u32_u24 v{va+1}, 9216, v4\nv_lshl_add_u32 v{va}, v3, 4, v{va+1}\nv_lshl_add_u32 v{va+1}, v3, 2, v{va+1}")
        a(f"s_mul_i32 s100, {sH}, 147456\ns_lshl_b32 s54, {sW}, 8\ns_add_u32 s99, s100, s54")
        a(f"s_and_b32 s54, {sW}, 1\ns_lshl_b32 s54, s54, 6\ns_add_u32 s100, s100, s54\ns_add_u32 s100, s100, 1024")
    def issue_capped(self, items, cap=40):
        a = self.a
        for t in items:
            if a.vm - a.vm_done + a.vm_slack >= 62: a(f"s_waitcnt vmcnt({cap})")
            a(t)
    def oproj_transpose(self):
        a = self.a
        a("s_mov_b32 s54, 0x05040100\ns_mov_b32 s55, 0x07060302")
        for rb in range(4):
            for j in range(8):
                for q in range(4):
                    lo, hi = 96 + 32 * rb + 4 * (2 * q) + (j >> 1), 96 + 32 * rb + 4 * (2 * q + 1) + (j >> 1)
                    a(f"v_perm_b32 v{64+32*rb+4*j+q}, v{hi}, v{lo}, s{54+(j&1)}")
        for rb in range(4):
            for j in range(2):
                for q in range(4):
                    a(f"v_perm_b32 v{192+8*rb+4*j+q}, v{224+8*rb+2*q+1}, v{224+8*rb+2*q}, s{54+j}")
    def oproj_compute_publish(self, part):
        a = self.a
        for kk in range(4):
            for j in range(8):
                c = "0" if kk == 0 else f"v[{224+4*j}:{227+4*j}]"
                a(f"v_mfma_f32_16x16x32_bf16 v[{224+4*j}:{227+4*j}], v[{48+4*kk}:{51+4*kk}], v[{64+32*kk+4*j}:{67+32*kk+4*j}], {c}")
            for j in range(2):
                c = "0" if kk == 0 else f"v[{40+4*j}:{43+4*j}]"
                a(f"v_mfma_f32_16x16x32_bf16 v[{40+4*j}:{43+4*j}], v[{48+4*kk}:{51+4*kk}], v[{192+8*kk+4*j}:{195+8*kk+4*j}], {c}")
        self.y_addr(); self.y_soff(part)
        for j in range(8): a(f"v_min_u32 v{16+j}, -2, v{224+4*j}")
        for j in range(2): a(f"v_min_u32 v{24+j}, -2, v{40+4*j}")
        self.y_store(16, 20, 24)

    def final_reduce(self, part):
        a = self.a
        skip = a.newlabel('nored')
        D = "row_mask:0xf bank_mask:0xf"
        a(f"s_lshl_b32 s54, {sW}, 5\ns_add_u32 s54, s54, s53\ns_cmp_ge_u32 s54, 72\ns_cbranch_scc1 {skip}")
        a(f"s_lshl_b32 s55, s54, 12\ns_add_u32 s55, s55, {WS_Y + part * WS_YPART}")
        a.c("output address: b = tau/18, k = tau%18")
        a(f"s_mul_hi_u32 s56, s54, {M18}\ns_mul_i32 s57, s56, 18\ns_sub_u32 s57, s54, s57")
        a(f"s_mul_i32 s56, s56, 2304\ns_add_u32 s56, s56, {1152*part}")
        a("s_lshr_b32 s58, s57, 1\ns_lshl_b32 s58, s58, 7\ns_and_b32 s59, s57, 1")
        a("s_cmp_lt_u32 s57, 16\ns_cselect_b32 s60, 3, 6\ns_cselect_b32 s61, 4, 3")
        a("s_lshl_b32 s59, s59, s60\ns_add_u32 s56, s56, s58\ns_add_u32 s56, s56, s59")
        a("v_lshlrev_b32 v5, s61, v1")
        if part: self.srd(SRD_D, P_OUT, 9216)
        self.masked_poll([(f"buffer_load_dwordx4 v[{16+4*i}:{19+4*i}], v2, {self.S(SRD_WS)}, s55 offen offset:{1024*i} sc1", 16 + 4 * i) for i in range(4)], 32)
        for r in range(4): a(f"v_add_f32 v{16+r}, v{16+r}, v{20+r}\nv_add_f32 v{24+r}, v{24+r}, v{28+r}")
        for r in range(4): a(f"v_add_f32 v{16+r}, v{16+r}, v{24+r}")
        for r in range(4): a(f"v_add_f32_dpp v{16+r}, v{16+r}, v{16+r} row_ror:8 {D}")
        for r in range(4): a(f"v_mov_b32 v{20+r}, v{16+r}")
        for r in range(4): a(f"v_permlane16_swap_b32 v{16+r}, v{20+r}")
        for r in range(4): a(f"v_add_f32 v{16+r}, v{16+r}, v{20+r}")
        for r in range(4): a(f"v_mov_b32 v{20+r}, v{16+r}")
        for r in range(4): a(f"v_permlane32_swap_b32 v{16+r}, v{20+r}")
        for r in range(4): a(f"v_add_f32 v{16+r}, v{16+r}, v{20+r}")
        a("v_cvt_pk_bf16_f32 v16, v16, v17\nv_cvt_pk_bf16_f32 v17, v18, v19")
        a("s_mov_b64 exec, 0xff")
        a(f"buffer_store_dwordx2 v[16:17], v5, {self.S(SRD_D)}, s56 offen")
        a("s_mov_b64 exec, -1")
        a.label(skip)

    def ckv_dma(self):
        a = self.a
        for i in range(8):
            a(f"s_add_u32 m0, s59, {1024*i}\ns_add_u32 s54, s58, {16384*(i>>2)}")
            a(f"buffer_load_dwordx4 v{20+(i&3)}, {self.S(SRD_A)}, s54 offen nt lds")
        a("s_add_u32 s58, s58, 32768\ns_add_u32 s59, s59, 8192")
    def ckv_regs(self, buf):
        f, base = buf
        return [f"buffer_load_dwordx4 {f}[{base+4*i}:{base+4*i+3}], v{20+(i&3)}, {self.S(SRD_A)}, s58 offen nt" +
                ("\ns_add_u32 s58, s58, 16384" if i & 3 == 3 else "") for i in range(8)]

    def qa_clear(self, half):
        a = self.a
        a(f"v_mov_b32 v7, {OOB_WS}\nv_cmp_gt_u32 vcc, 32, v1\nv_cndmask_b32 v123, v7, v2, vcc")
        a(f"s_lshl_b32 s98, {sH}, 12\ns_lshl_b32 s54, {sW}, 9\ns_add_u32 s98, s98, s54\ns_add_u32 s98, s98, {WS_QA + 2048*half}")
        a(f"buffer_store_dwordx4 v[20:23], v123, {self.S(SRD_WS)}, s98 offen sc1")
    def qa_publish(self, acc):
        a = self.a
        base = LDS_X + 8192
        self.proj_store_partials(acc, 5, base)
        a(f"s_lshl_b32 s54, {sW}, 9\ns_add_u32 s54, s54, {base}\nv_add_u32 v5, s54, v2")
        for w in range(4): a(f"ds_read_b128 v[{96+4*w}:{99+4*w}], v5 offset:{2048*w}")
        a("s_waitcnt lgkmcnt(0)")
        for r in range(4): a(f"v_add_f32 v{96+r}, v{96+r}, v{100+r}\nv_add_f32 v{104+r}, v{104+r}, v{108+r}")
        for r in range(4): a(f"v_add_f32 v{96+r}, v{96+r}, v{104+r}")
        for r in range(4): a(f"v_min_u32 v{124+r}, -2, v{96+r}")
        a(f"buffer_store_dwordx4 v[124:127], v123, {self.S(SRD_WS)}, s98 offen sc1")

    def ltest(self):
        a = self.a
        m = self.o['ltest']
        a.vm_reset()
        a("s_waitcnt lgkmcnt(0)")
        self.srd(SRD_WS, P_WS, 0x20000000); self.srd(SRD_A, P_CKV, 0x1000000)
        a(f"s_lshl_b32 s55, {sH}, 2\ns_add_u32 s55, s55, {sW}\ns_lshl_b32 s55, s55, 7\ns_add_u32 s55, s55, {WS_CTR}")
        a(f"s_mov_b64 exec, 1\nv_mov_b32 v5, 0\nbuffer_store_dword v5, v5, {self.S(SRD_WS)}, s55 offen sc1\ns_mov_b64 exec, -1")
        if m == 1:
            a(f"s_lshl_b32 s54, s2, 18\ns_lshl_b32 s55, {sW}, 16\ns_add_u32 s54, s54, s55\nv_mov_b32 v5, v2"); st = 1024
        elif m == 2:
            a(f"s_lshr_b32 s54, s2, 5\ns_lshl_b32 s54, s54, 23\ns_lshl_b32 s55, {sW}, 21\ns_add_u32 s54, s54, s55\ns_lshl_b32 s55, {sH}, 8\ns_add_u32 s54, s54, s55")
            a("v_lshlrev_b32 v5, 19, v4\nv_lshl_add_u32 v5, v3, 4, v5"); st = 8192
        elif m == 3:
            a(f"s_lshl_b32 s54, s2, 18\ns_lshl_b32 s55, {sW}, 8\ns_add_u32 s54, s54, s55")
            a("v_lshlrev_b32 v5, 10, v4\nv_lshl_add_u32 v5, v3, 4, v5"); st = 4096
        elif m == 4:
            a(f"s_lshr_b32 s54, s2, 5\ns_lshl_b32 s54, s54, 23\ns_lshl_b32 s55, {sW}, 21\ns_add_u32 s54, s54, s55\ns_lshl_b32 s55, {sH}, 8\ns_add_u32 s54, s54, s55")
            a("v_lshlrev_b32 v5, 13, v4\nv_lshl_add_u32 v5, v3, 4, v5"); st = 32768
        elif m == 5:
            a(f"s_lshr_b32 s54, s2, 3\ns_lshl_b32 s54, s54, 21\ns_lshl_b32 s55, {sW}, 19\ns_add_u32 s54, s54, s55\ns_and_b32 s55, s2, 7\ns_lshl_b32 s55, s55, 10\ns_add_u32 s54, s54, s55")
            a("v_mov_b32 v5, v2"); st = 8192
        if m < 9:
            for k in range(64):
                if k >= 32: a("s_waitcnt vmcnt(31)")
                a(f"buffer_load_dwordx4 a[{4*k}:{4*k+3}], v5, {self.S(SRD_A)}, s54 offen nt\ns_add_u32 s54, s54, {st}")
        a("s_waitcnt vmcnt(0)")
        self.stamp(3); self.stamp(4)
        self.write_stamps()
        a("s_endpgm")

    def role_h(self):
        a = self.a
        a.label("L_roleH")
        if self.o.get('ltest'): self.ltest()
        if self.o.get('noH'): a("s_endpgm")
        a.vm_reset(); a.vm_slack = 1
        a("s_mov_b32 s101, " + str(self.o.get("spin", 100000)))
        if self.stamps: a(f"s_mov_b32 s2, {sH}")
        self.code_prefetch("L_roleH", "L_roleH_end", 1)
        for r in range(4): a(f"v_mov_b32 v{20+r}, -1")
        self.y_addr(); self.y_soff(1)
        a("s_waitcnt lgkmcnt(0)")
        self.srd(SRD_WS, P_WS, 0x20000000)
        self.y_store(20, 20, 20)
        self.qabs_store(20)
        st = Stream(a, self.o.get('hahead', 28))
        wl = lambda base, t, v, srd, so: f"buffer_load_dwordx4 a[{base+4*t}:{base+3+4*t}], v{v}, {self.S(srd)}, s{so} offen nt\ns_add_u32 s{so}, s{so}, 8192"
        if self.QS == 2:
            self.qa_clear(0)
            mC = a.mark()
            self.srd(SRD_C, P_WQ, 576 * 8192); self.srd(SRD_D, P_AX, 4608)
            self.x_loads(SRD_D, 24, 18, 0)
            self.wq_addr(18, 0)
            iWA = [st.add([wl(0, t, 120, SRD_C, 61) for t in range(9 * g, 9 * g + 9)]) for g in range(2)]
            st.issue(18)
        self.srd(SRD_A, P_BWQ, 576 * 8192); self.srd(SRD_B, P_BX, 4608)
        self.x_loads(SRD_B, 48)
        self.wq_addr()
        iW = [st.add([wl(112, t, 120, SRD_A, 61) for t in range(9 * g, 9 * g + 9)]) for g in range(4)]
        st.issue(iW[0])
        a.c("w_uk rows 128w + 4i + g -> LDS w*32K + row*256, chunk n holds column chunk n ^ (g<<2) ^ ((i>>1)&3)")
        self.srd(SRD_B, P_WUK, 512 * 8192); self.srd(SRD_C, P_WUV, 512 * 8192)
        a("v_lshlrev_b32 v5, 2, v4\nv_xor_b32 v5, v5, v3\nv_lshlrev_b32 v6, 13, v4")
        for m in range(4): a(f"v_xor_b32 v7, {m}, v5\nv_lshl_add_u32 v{88+m}, v7, 4, v6")
        a(f"s_lshl_b32 s62, {sW}, 20\ns_lshl_b32 s54, {sH}, 8\ns_add_u32 s62, s62, s54\ns_mov_b32 s60, s62\ns_lshl_b32 s63, {sW}, 15")
        iU = [st.add([f"s_add_u32 m0, s63, {1024*i}\ns_nop 0\nbuffer_load_dwordx4 v{88+((i>>1)&3)}, {self.S(SRD_B)}, s60 offen nt lds\ns_add_u32 s60, s60, 32768"
                      for i in range(8 * g, 8 * g + 8)]) for g in range(4)]
        a.c("w_uv -> a[4t]: row = 128w + 32g + t")
        a(f"v_lshlrev_b32 v121, 18, v4\nv_lshl_add_u32 v121, v3, 4, v121")
        a.c("P2 read addresses v[92:95]")
        a("v_lshrrev_b32 v5, 2, v3\nv_and_b32 v6, 3, v3\nv_lshl_add_u32 v7, v5, 3, v6\nv_lshlrev_b32 v92, 8, v7")
        a("v_lshl_or_b32 v5, v6, 2, v5\nv_xor_b32 v5, v5, v4\nv_lshl_add_u32 v92, v5, 4, v92\nv_add_u32 v92, s63, v92")
        for kk in range(1, 4): a(f"v_xor_b32 v{92+kk}, {64*kk}, v92")
        self.selectors()
        if self.QS == 2:
            a.wait_for(mC); a("s_barrier")
            self.signal(None)
            for g in range(2):
                st.need(iWA[g])
                self.proj_mfma(list(range(9 * g, 9 * g + 9)), 24, 12, 96, 112, lambda t: f"a[{4*t}:{4*t+3}]", g == 0)
            self.qa_publish(112)
        self.stamp(1)
        if self.o.get('onlyA'):
            self.write_stamps(); a("s_endpgm")
        for g in range(4):
            st.need(iW[g])
            self.proj_mfma(list(range(9 * g, 9 * g + 9)), 48, 20, 96, 112, lambda t: f"a[{112+4*t}:{115+4*t}]", g == 0)
        self.proj_store_partials(112, 5)
        st.issue(iU[3])
        self.operand_from_partials(5, 48, 96)
        self.stamp(2)
        a.c("P2: q_abs tiles -> v[48+4T..]; tile T row i -> c = 128w + 32(T>>1) + 8(i>>2) + 4(T&1) + (i&3)")
        for P in range(4):
            st.need(iU[P])
            for T in (2 * P, 2 * P + 1):
                for kk in range(4):
                    r = 128 + 16 * (T & 3) + 4 * kk
                    a(f"ds_read_b128 v[{r}:{r+3}], v{92+kk} offset:{(32*(T>>1) + 4*(T&1)) * 256}")
            for T in (2 * P, 2 * P + 1):
                for kk in range(4):
                    a(f"s_waitcnt lgkmcnt({7 - 4*(T&1) - kk})")
                    c = "0" if kk == 0 else f"v[{48+4*T}:{51+4*T}]"
                    r = 128 + 16 * (T & 3) + 4 * kk
                    a(f"v_mfma_f32_16x16x32_bf16 v[{48+4*T}:{51+4*T}], v[{r}:{r+3}], v[{96+4*kk}:{99+4*kk}], {c}")
        a(f"s_mov_b32 s96, {f2u(SCALE * LOG2E)}")
        a("v_and_b32 v6, 3, v3")
        for P in range(1, 4):
            a(f"v_cmp_eq_u32 vcc, {P}, v6")
            for r in range(8): a(f"v_cndmask_b32 v{48+r}, v{48+r}, v{48+8*P+r}, vcc")
        for r in range(8): a(f"v_mul_f32 v{48+r}, s96, v{48+r}")
        for r in range(4): a(f"v_cvt_pk_bf16_f32 v{24+r}, v{48+2*r}, v{49+2*r}")
        for r in range(4): a(f"v_min_u32 v{24+r}, -2, v{24+r}")
        self.qabs_store(24)
        self.stamp(3)
        for t in range(32): a(wl(0, t, 121, SRD_C, 62))
        self.srd(SRD_B, P_BWO, 32 * 147456)
        self.oproj_addr()
        main, extra = self.oproj_list(SRD_B)
        self.issue_capped(main)
        self.flags_issue(16, 17)
        self.issue_capped(extra)
        a("s_waitcnt vmcnt(0)")
        self.oproj_transpose()
        a("s_barrier")
        self.stamp(4)
        self.flags_check(16, 17)
        D = "row_mask:0xf bank_mask:0xf"
        a.c("P6: combine the 8 splits of (h, b=w); (m, l) of a split is written after its data has been acknowledged")
        a(f"s_lshl_b32 s58, {sW}, 18\ns_lshl_b32 s54, {sH}, 10\ns_add_u32 s58, s58, s54\ns_add_u32 s58, s58, {WS_BO}")
        a(f"s_lshl_b32 s59, {sW}, 11\ns_lshl_b32 s54, {sH}, 3\ns_add_u32 s59, s59, s54\ns_add_u32 s59, s59, {WS_BML}")
        a("s_mov_b32 s98, 0xffff0000\nv_and_b32 v5, 7, v1\nv_lshlrev_b32 v5, 8, v5")
        light, heavy = a.newlabel('blight'), a.newlabel('bheavy')
        a.label(light)
        a(f"buffer_load_dwordx2 v[232:233], v5, {self.S(SRD_WS)}, s59 offen sc1")
        a(f"s_waitcnt vmcnt(0)\nv_max_u32 v6, v232, v233\nv_cmp_eq_u32 vcc, -1, v6\ns_cbranch_vccz {heavy}\ns_sleep 2\ns_sub_u32 s101, s101, 1\ns_cbranch_scc0 {light}\ns_mov_b32 s101, 0")
        a.label(heavy)
        self.stamp(5)
        for s in range(8):
            a(f"buffer_load_dwordx4 v[{16+4*s}:{19+4*s}], v2, {self.S(SRD_WS)}, s58 offen sc1 nt\ns_add_u32 s58, s58, 32768")
        a(f"v_max_f32_dpp v234, v232, v232 row_ror:1 {D}\nv_max_f32_dpp v234, v234, v234 row_ror:2 {D}\nv_max_f32_dpp v234, v234, v234 row_ror:4 {D}")
        a("v_sub_f32 v232, v232, v234\nv_exp_f32 v232, v232\nv_mul_f32 v232, v232, v233")
        a(f"v_add_f32_dpp v234, v232, v232 row_ror:1 {D}\nv_add_f32_dpp v234, v234, v234 row_ror:2 {D}\nv_add_f32_dpp v234, v234, v234 row_ror:4 {D}")
        a("v_rcp_f32 v234, v234\nv_mul_f32 v232, v232, v234")
        for s in range(8):
            a(f"s_waitcnt vmcnt({7-s})")
            op = "v_mul_f32_dpp" if s == 0 else "v_fmac_f32_dpp"
            for q in range(4): a(f"v_lshlrev_b32 v{240+q}, 16, v{16+4*s+q}\nv_and_b32 v{16+4*s+q}, s98, v{16+4*s+q}")
            for q in range(4): a(f"{op} v{224+2*q}, v232, v{240+q} row_newbcast:{s} {D}\n{op} v{225+2*q}, v232, v{16+4*s+q} row_newbcast:{s} {D}")
        for q in range(4): a(f"v_cvt_pk_bf16_f32 v{244+q}, v{224+2*q}, v{225+2*q}")
        a(f"s_lshl_b32 s54, {sW}, 10\nv_add_u32 v5, s54, v2")
        a("ds_write_b128 v5, v[244:247]")
        a.c("P7: ctx = O_lat @ w_uv")
        a(f"v_lshrrev_b32 v5, 3, v3\nv_lshlrev_b32 v5, 10, v5\nv_lshl_add_u32 v5, v4, 6, v5\ns_lshl_b32 s54, {sW}, 8\nv_add_u32 v5, s54, v5")
        a("s_waitcnt lgkmcnt(0)\ns_barrier")
        for p in range(2):
            for k in range(4): a(f"ds_read_b128 v[{16+16*p+4*k}:{19+16*p+4*k}], v5 offset:{2048*p+16*k}")
        a("s_waitcnt lgkmcnt(0)")
        self.proj_mfma(list(range(32)), 16, 16, 48, 224, lambda t: f"a[{4*t}:{4*t+3}]", True)
        self.proj_store_partials(224, 5)
        self.operand_from_partials(5, 16, 48)
        self.stamp(6)
        self.oproj_compute_publish(1)
        self.stamp(7)
        self.final_reduce(1)
        self.stamp(8)
        self.write_stamps()
        a("s_endpgm")
        a.label("L_roleH_end")

    def role_c(self):
        a = self.a
        D = "row_mask:0xf bank_mask:0xf"
        a.label("L_roleC")
        if self.o.get('noC'): a("s_endpgm")
        if self.o.get('ltest'): a("s_branch L_roleH")
        if self.o.get('wtest'):
            fl = ['sc1', 'sc1 nt', 'sc0 sc1', '', 'nt', 'sc0 sc1 nt'][self.o.get('wfl', 0)]
            a("s_waitcnt lgkmcnt(0)")
            self.srd(SRD_WS, P_WS, 0x20000000)
            a(f"s_lshl_b32 s54, {sH}, 2\ns_add_u32 s54, s54, {sW}\ns_lshl_b32 s54, s54, {10 if self.o.get('wdense') else 16}")
            if self.o.get('wdel'):
                for _ in range(self.o['wdel']): a("s_sleep 127")
            if self.o.get('wstag'):
                a(f"s_lshl_b32 s55, {sH}, 2\ns_add_u32 s55, s55, {sW}\nL_stag:\ns_sleep {self.o['wstag']}\ns_sub_u32 s55, s55, 1\ns_cbranch_scc0 L_stag")
            a(f"s_lshl_b32 s55, {sH}, 2\ns_add_u32 s55, s55, {sW}\ns_lshl_b32 s55, s55, 7\ns_add_u32 s55, s55, {WS_CTR}")
            a(f"s_mov_b64 exec, 1\nv_mov_b32 v5, 0\nbuffer_store_dword v5, v5, {self.S(SRD_WS)}, s55 offen sc1\ns_mov_b64 exec, -1\ns_add_u32 s54, s54, 0x2000000")
            per = self.o.get('wper', 999)
            mode = self.o.get('wld', 0)
            if self.o.get('wsp'): a("v_lshlrev_b32 v2, 7, v1")
            stp = 8192 if self.o.get('wsp') else 131072 if self.o.get('wdense') else 1024
            for k in range(self.o['wtest']):
                if self.o.get('wsl'): a(f"s_sleep {self.o['wsl']}")
                if mode == 2 and k == per: a("s_xor_b32 s54, s54, 0x40000")
                a(f"s_add_u32 s55, s54, {stp * (k % per)}")
                if mode == 1 or (mode == 2 and k >= per): a(f"buffer_load_dwordx4 v[24:27], v2, {self.S(SRD_WS)}, s55 offen {fl}")
                elif mode == 3: a(f"v_lshlrev_b32 v2, 3, v1\nbuffer_store_dwordx2 v[20:21], v2, {self.S(SRD_WS)}, s55 offen {fl}")
                elif mode == 4: a(f"s_mov_b64 exec, 1\nbuffer_atomic_add v20, v2, {self.S(SRD_WS)}, s54 offen sc0\nbuffer_atomic_add v21, v2, {self.S(SRD_WS)}, s54 offen sc0\nbuffer_atomic_add v22, v2, {self.S(SRD_WS)}, s54 offen sc0\nbuffer_atomic_add v23, v2, {self.S(SRD_WS)}, s54 offen sc0\ns_waitcnt vmcnt(30)")
                elif mode == 5: a(f"v_lshlrev_b32 v2, 5, v1\nv_and_b32 v2, 0xf80, v2\nv_and_b32 v5, 3, v1\nv_lshl_add_u32 v2, v5, 4, v2\nbuffer_store_dwordx4 v[20:23], v2, {self.S(SRD_WS)}, s55 offen {fl}")
                else: a(f"buffer_store_dwordx4 v[20:23], v2, {self.S(SRD_WS)}, s55 offen {fl}")
            a("s_waitcnt vmcnt(0)\ns_endpgm")
        a.vm_reset(); a.vm_slack = 1
        a("s_mov_b32 s101, " + str(self.o.get("spin", 100000)))
        if self.stamps: a(f"s_add_u32 s2, {sH}, 32")
        self.code_prefetch("L_roleC", "L_roleC_end", 2)
        for r in range(4): a(f"v_mov_b32 v{20+r}, -1")
        self.y_addr(); self.y_soff(0)
        a("s_waitcnt lgkmcnt(0)")
        self.srd(SRD_WS, P_WS, 0x20000000)
        self.y_store(20, 20, 20)
        self.qa_clear(self.QS - 1)
        a.c("clear the partial slots of (h, b=w) and zero the tile counter")
        self.part_addr(NSH)
        self.is_shared(); a(f"s_mov_b32 s56, {(1 << NSH) - 1}\ns_cselect_b32 s56, {(1 << NSD) - 1}, s56\ns_mov_b32 s57, 0\ns_cbranch_scc0 L_cclr")
        for k in range(NSH // 4, NSD // 4): a("buffer_store_dwordx4 v[20:23], " + self.part_io(k))
        a(f"s_lshl_b32 s55, {sH}, 2\ns_add_u32 s55, s55, {sW}\ns_lshl_b32 s55, s55, 7\ns_add_u32 s55, s55, {WS_CTR}")
        a(f"v_mov_b32 v5, 0\ns_mov_b64 exec, 1\nbuffer_store_dword v5, v5, {self.S(SRD_WS)}, s55 offen sc1")
        a.c("(m, l) of this workgroup's split: 256 B")
        a(f"s_lshl_b32 s55, s53, 8\ns_add_u32 s55, s55, {WS_BML}\ns_mov_b64 exec, 0xffff\nbuffer_store_dwordx4 v[20:23], v2, {self.S(SRD_WS)}, s55 offen sc1\ns_mov_b64 exec, -1")
        a.label("L_cclr")
        for k in range(NSH // 4): a("buffer_store_dwordx4 v[20:23], " + self.part_io(k))
        a(f"s_mov_b64 exec, s[56:57]\nbuffer_store_dwordx4 v[20:23], v2, {self.S(SRD_WS)}, s59 offen offset:2048 sc1\ns_mov_b64 exec, -1")
        mC = a.mark()
        if self.o.get('noH'): a("s_endpgm")
        self.srd(SRD_C, P_WQ, 576 * 8192); self.srd(SRD_D, P_AX, 4608); self.srd(SRD_A, P_CKV, 0x1000000)
        T, row0 = (18, 288) if self.QS == 2 else (36, 0)
        self.x_loads(SRD_D, 48, T, row0)
        self.wq_addr(T, row0)
        mW = []
        for g in range(T // 9):
            self.wq_loads(range(9 * g, 9 * g + 9), SRD_C, 'nt', 0); mW.append(a.mark())
        self.selectors()
        a.wait_for(mC); a("s_barrier")
        self.signal(None)
        a.c("c_kv DMA setup: b = c>>3, s = c&7; voffsets v[20:23]")
        a("v_lshlrev_b32 v5, 2, v4\nv_xor_b32 v5, v5, v3\nv_lshlrev_b32 v6, 10, v4")
        for i in range(4):
            a(f"v_xor_b32 v7, {i}, v5\nv_lshl_add_u32 v{20+i}, v7, 4, v6")
            if i: a(f"v_add_u32 v{20+i}, {4096*i}, v{20+i}")
        a(f"s_lshl_b32 s58, s53, 19\ns_lshl_b32 s54, {sW}, 8\ns_add_u32 s58, s58, s54")
        a(f"s_lshl_b32 s63, {sW}, 15\ns_mov_b32 s59, s63")
        self.ckv_dma()
        for g in range(T // 9):
            a.wait_for(mW[g])
            self.proj_mfma(list(range(9 * g, 9 * g + 9)), 48, xs(T), 96, 112, lambda t: f"a[{4*t}:{4*t+3}]", g == 0)
        self.qa_publish(112)
        self.stamp(1)
        if self.o.get('onlyA'):
            a("s_waitcnt vmcnt(0)")
            self.write_stamps(); a("s_endpgm")
        for _ in range(3): self.ckv_dma()
        RB = [('a', 96), ('a', 128), ('a', 160), ('a', 192), ('a', 224), ('v', 224)][:self.o.get('nb', 6)]
        NB = len(RB)
        a.c("the next tiles wait in registers")
        for k in range(NB):
            a("s_waitcnt vmcnt(40)")
            if k == NB - 2: self.flags_issue(27, 18)
            for t in self.ckv_regs(RB[k]): a(t)
        self.srd(SRD_B, P_WO, 32 * 147456)
        self.oproj_addr(48)
        a("v_add_u32 v26, s63, v2")
        a.c("LDS addresses: v[32:39] QK reads, v[40:47] tr reads, v[28:31] X (own, ^1, ^2, ^3); v19 q_abs voffset")
        a("v_and_b32 v24, 31, v1\nv_lshrrev_b32 v25, 5, v1\nv_lshlrev_b32 v19, 10, v24\nv_lshl_add_u32 v19, v25, 4, v19")
        a(f"s_lshr_b32 s96, s53, 3\ns_lshl_b32 s96, s96, 15\ns_lshl_b32 s55, {sW}, 8\ns_add_u32 s96, s96, s55\ns_add_u32 s96, s96, {WS_QABS}")
        a("v_and_b32 v5, 3, v24\nv_lshlrev_b32 v5, 2, v5\nv_bfe_u32 v6, v24, 2, 2\nv_or_b32 v5, v5, v6\nv_xor_b32 v5, v5, v25")
        a("v_lshlrev_b32 v32, 8, v24\nv_lshl_add_u32 v32, v5, 4, v32\nv_add_u32 v32, s63, v32")
        a("v_bfe_u32 v5, v1, 2, 2")
        a("v_lshl_add_u32 v6, v25, 2, v5\nv_lshlrev_b32 v40, 8, v6")
        a("v_and_b32 v6, 1, v1\nv_lshl_add_u32 v40, v6, 3, v40")
        a("v_bfe_u32 v6, v1, 4, 1\nv_lshlrev_b32 v6, 1, v6\nv_bfe_u32 v7, v1, 1, 1\nv_or_b32 v6, v6, v7\nv_xor_b32 v6, v6, v25")
        a("v_lshl_or_b32 v6, v5, 2, v6\nv_lshl_add_u32 v40, v6, 4, v40\nv_add_u32 v40, s63, v40")
        for k in range(1, 8): a(f"v_xor_b32 v{32+k}, {32*k}, v32\nv_xor_b32 v{40+k}, {32*k}, v40")
        a(f"s_lshl_b32 s54, {sW}, 12\ns_add_u32 s54, s54, {LDS_X}\nv_add_u32 v28, s54, v2")
        for k in range(1, 4): a(f"v_xor_b32 v{28+k}, {4096*k}, v28")
        for r in range(64): a(f"v_mov_b32 v{64+r}, 0")
        a("v_mov_b32 v216, 0xff800000\nv_mov_b32 v217, 0")
        a("s_waitcnt vmcnt(0)")
        self.stamp(2)
        self.flags_check(27, 18)
        a("s_barrier")
        QKr = lambda sl: [f"ds_read_b128 a[{32+4*kk}:{35+4*kk}], v{32+kk} offset:{8192*sl}" for kk in range(8)]
        for t in QKr(0): a(t)
        self.stamp(3)
        a.c("P3: q_abs fragments a[0:31]: lane (head=l&31, hh=l>>5); only the lanes still missing are read again")
        qpoll, qok = a.newlabel('qpoll'), a.newlabel('qok')
        a.label(qpoll)
        for kk in range(8):
            a(f"buffer_load_dwordx4 v[{128+4*kk}:{131+4*kk}], v19, {self.S(SRD_WS)}, s96 offen offset:{32*kk} sc1")
        a("s_waitcnt vmcnt(0)")
        self.umax(5, list(range(128, 160)), 6)
        a(f"v_cmp_eq_u32 vcc, -1, v5\ns_mov_b64 exec, vcc\ns_cbranch_execz {qok}\ns_sub_u32 s101, s101, 1\ns_cbranch_scc0 {qpoll}\ns_mov_b32 s101, 0")
        a.label(qok)
        a("s_mov_b64 exec, -1")
        for r in range(32): a(f"v_accvgpr_write_b32 a{r}, v{128+r}")
        QKm = [f"v_mfma_f32_32x32x16_bf16 v[128:143], a[{32+4*kk}:{35+4*kk}], a[{4*kk}:{4*kk+3}], " + ("0" if kk == 0 else "v[128:143]") for kk in range(8)]
        TR = lambda sl: [f"ds_read_b64_tr_b16 a[{64+(T*2+t)*4+2*u}:{65+(T*2+t)*4+2*u}], v{40+2*T+u} offset:{8192*sl+(16*t+8*u)*256}"
                         for t in range(2) for T in range(4) for u in range(2)]
        Xw = lambda xb: [f"ds_write_b128 v28, v[{128+4*q}:{131+4*q}] offset:{16384*xb+1024*q}" for q in range(4)]
        Xr = lambda xb: [f"ds_read_b128 v[{128+16*k+4*q}:{131+16*k+4*q}], v{28+k} offset:{16384*xb+1024*q}" for k in range(1, 4) for q in range(4)]
        a("s_waitcnt lgkmcnt(0)")
        self.stamp(10)
        for t in QKm + Xw(0): a(t)
        a("s_waitcnt lgkmcnt(0)\ns_barrier")
        for t in Xr(0): a(t)
        wr_it = {t: (t - 4 if t < 4 + NB else t - 2) for t in range(4, 16)}
        free_at = {}
        pend = []
        for t in range(4 + NB, 16):
            pend += [(x, wr_it[t - NB], t, i) for i, x in enumerate(self.ckv_regs(RB[(t - 4) % NB]))]
        for t in range(4, 16): free_at[RB[(t - 4) % NB]] = wr_it[t]
        main, extra = self.oproj_list(SRD_B, 'a', 48)
        wo = [(x, free_at.get(('a', 96 + 32 * (k // 8)), -1), 99, k) for k, x in enumerate(main)] + [(x, free_at.get(('a', 224), -1), 99, 0) for x in extra]
        pend += wo
        pace = [int(c, 16) for c in str(self.o.get('pace', '8866666666666200'))]
        lmark = {}
        PV = lambda t, T: f"v_mfma_f32_32x32x16_bf16 v[{64+16*T}:{79+16*T}], a[{64+(T*2+t)*4}:{67+(T*2+t)*4}], v[{208+4*t}:{211+4*t}], v[{64+16*T}:{79+16*T}]"
        def emit(items):
            for t in items:
                if isinstance(t, str): a(t)
                else: t()
        def load(p):
            def f():
                a(p[0]); lmark[(p[2], p[3])] = a.mark()
            return f
        def write(t, i):
            def f():
                if (t, i) in lmark: a.wait_for(lmark[(t, i)])
                else: assert t < 4 + NB
                fb, base = RB[(t - 4) % NB]
                a(f"ds_write_b128 v26, {fb}[{base+4*i}:{base+4*i+3}] offset:{8192*(t&3)+1024*i}")
            return f
        for it in range(16):
            sl, nx, last = it & 3, (it + 1) & 3, it == 15
            early, late = [], []
            if it in (2, 4, 8, 12): self.stamp({2: 11, 4: 12, 8: 13, 12: 14}[it])
            while len(early) + len(late) < pace[it] and pend and pend[0][1] <= it:
                p = pend.pop(0)
                (early if p[1] < it and len(early) < pace[it] // 2 and not late else late).append(p)
            wt = [t for t in wr_it if wr_it[t] == it]
            if not last:
                for t in QKr(nx): a(t)
                a("s_waitcnt lgkmcnt(8)")
            else: a("s_waitcnt lgkmcnt(0)")
            emit(mix([f"v_add_f32 v{144+r}, v{144+r}, v{128+r}" for r in range(16)], [load(p) for p in early[:1]], 8, 4))
            v = [f"v_add_f32 v{160+r}, v{160+r}, v{176+r}" for r in range(16)]
            v += [f"v_add_f32 v{144+r}, v{144+r}, v{160+r}" for r in range(16)]
            v += ["v_max3_f32 v218, v144, v145, v146", "v_max3_f32 v219, v147, v148, v149", "v_max3_f32 v220, v150, v151, v152", "v_max3_f32 v221, v153, v154, v155",
                  "v_max3_f32 v218, v218, v156, v157", "v_max3_f32 v219, v219, v158, v159", "v_max3_f32 v218, v218, v219, v220", "v_max_f32 v218, v218, v221"]
            a("s_waitcnt lgkmcnt(0)")
            tr = TR(sl)
            side = [("" if last else QKm[k] + "\n") + tr[2*k] + "\n" + tr[2*k+1] for k in range(8)]
            for t in mix(v, side, 5): a(t)
            a("v_mov_b32 v219, v218\nv_permlane32_swap_b32 v218, v219\nv_max3_f32 v218, v218, v219, v216")
            a("v_sub_f32 v220, v216, v218\nv_mov_b32 v216, v218\nv_exp_f32 v220, v220")
            emit(mix([f"v_sub_f32 v{192+r}, v{144+r}, v218" for r in range(16)], [load(p) for p in early[1:]], 5, 2))
            v = [f"v_exp_f32 v{192+r}, v{192+r}" for r in range(16)]
            for t in mix(v, [] if last else Xw(nx & 1), 4): a(t)
            a("v_mul_f32 v217, v217, v220")
            for r in range(8): a(f"v_cvt_pk_bf16_f32 v{208+r}, v{192+2*r}, v{193+2*r}")
            for r in range(16): a(f"v_mul_f32 v{64+r}, v{64+r}, v220")
            a("s_waitcnt lgkmcnt(0)")
            if not last: a("s_barrier")
            side = []
            for i in range(8):
                g = [write(t, i) for t in wt]
                n = (len(late) * (i + 1) + 7) // 8 - (len(late) * i + 7) // 8
                side.append(g)
            k = 0
            for j, p in enumerate(late):
                pos = max(k, j * 8 // max(len(late), 1), p[3] % 8 if p[1] == it and p[2] != 99 or (p[1] == it and p in wo[:32]) else 0)
                if p[1] == it and p in wo[32:]: pos = 7
                side[pos].append(load(p)); k = pos
            xr = [] if last else Xr(nx & 1)
            for T in range(4):
                a(PV(0, T))
                if T < 3:
                    v = [f"v_mul_f32 v{80+16*T+r}, v{80+16*T+r}, v220" for r in range(16)]
                    v = mix(v, xr[4*T:4*T+4], 2)
                    v = mix(v, [PV(1, T)], 1, 8)
                else:
                    v = [f"v_add_f32 v{192+r}, v{192+r}, v{200+r}" for r in range(8)] + [PV(1, T)]
                    v += [f"v_add_f32 v{192+r}, v{192+r}, v{196+r}" for r in range(4)]
                    v += ["v_add_f32 v192, v192, v193", "v_add_f32 v194, v194, v195", "v_add_f32 v192, v192, v194", "v_add_f32 v217, v217, v192"]
                grp = [(lambda g: (lambda: emit(g)))(g) for g in side[2*T:2*T+2]]
                emit(mix(v, grp, 8, 4))
        assert all(p[2] == 99 for p in pend)
        rest = [p[0] for p in pend]
        a("s_waitcnt lgkmcnt(0)")
        self.stamp(4)
        a.c("P5: normalise, transpose through the wave's own ring region, publish")
        a("v_mov_b32 v219, v217\nv_permlane32_swap_b32 v217, v219\nv_add_f32 v217, v217, v219\nv_rcp_f32 v220, v217")
        a(f"v_mul_u32_u24 v5, 272, v24\nv_lshl_add_u32 v5, v25, 3, v5\nv_add_u32 v5, s63, v5")
        for r in range(64): a(f"v_mul_f32 v{64+r}, v{64+r}, v220")
        for r in range(32): a(f"v_cvt_pk_bf16_f32 v{128+r}, v{64+2*r}, v{65+2*r}")
        for r in (216, 217): a(f"v_min_u32 v{r}, -2, v{r}")
        a(f"v_mov_b32_dpp v218, v216 quad_perm:[1,1,3,3] {D}\nv_mov_b32_dpp v219, v217 quad_perm:[1,1,3,3] {D}")
        for k in range(16): a(f"ds_write_b64 v5, v[{128+2*k}:{129+2*k}] offset:{16*k}")
        a(f"v_mul_u32_u24 v6, 272, v4\nv_lshl_add_u32 v6, v3, 4, v6\nv_add_u32 v6, s63, v6")
        a("s_waitcnt lgkmcnt(0)")
        for k in range(8): a(f"ds_read_b128 v[{64+4*k}:{67+4*k}], v6 offset:{272*4*k}")
        a("v_lshlrev_b32 v7, 10, v4\nv_lshl_add_u32 v7, v3, 4, v7")
        a(f"s_lshl_b32 s54, s53, 15\ns_lshl_b32 s55, {sW}, 8\ns_add_u32 s54, s54, s55\ns_add_u32 s54, s54, {WS_BO}")
        for k in range(8):
            a(f"s_waitcnt lgkmcnt({7-k})")
            a(f"buffer_store_dwordx4 v[{64+4*k}:{67+4*k}], v7, {self.S(SRD_WS)}, s54 offen sc1")
            a("s_add_u32 s54, s54, 4096")
        mP = a.mark()
        n1 = self.o.get('wo1', 8)
        for t in rest[:n1]: a(t)
        rest = rest[n1:]
        a(f"v_lshlrev_b32 v5, 3, v1\ns_lshl_b32 s54, s53, 8\ns_add_u32 s54, s54, {WS_BML}\ns_cmp_eq_u32 {sW}, 0\ns_cselect_b32 s56, 0x55555555, 0\ns_mov_b32 s57, 0")
        a.wait_for(mP); a("s_barrier")
        a(f"s_mov_b64 exec, s[56:57]\nbuffer_store_dwordx4 v[216:219], v5, {self.S(SRD_WS)}, s54 offen sc1\ns_mov_b64 exec, -1")
        self.stamp(15)
        self.issue_capped(rest)
        self.stamp(5)
        a("s_waitcnt vmcnt(0)")
        for r in range(96, 256): a(f"v_accvgpr_read_b32 v{r}, a{r}")
        self.oproj_transpose()
        self.stamp(6)
        a.c("P9: wait for the partials of (h, b=w)")
        self.srd(SRD_D, P_OUT, 9216)
        a(f"s_mov_b32 s97, {f2u(LOG2E)}\ns_mov_b32 s98, 0xffff0000")
        a(f"s_lshl_b32 s54, {sW}, 9\nv_lshl_add_u32 v5, v3, 4, s54\nv_lshl_add_u32 v5, v4, 2, v5")
        a("v_lshrrev_b32 v7, 2, v3\nv_lshlrev_b32 v7, 9, v7\nv_lshl_add_u32 v7, v4, 4, v7")
        self.is_shared(); a("s_cbranch_scc1 L_cshared")
        self.combine(NSH)
        a("s_branch L_cmerged")
        a.label("L_cshared")
        self.combine(NSD)
        a.label("L_cmerged")
        a("v_cvt_pk_bf16_f32 v224, v224, v225\nds_write_b32 v5, v224")
        a("s_waitcnt lgkmcnt(0)\ns_barrier")
        for kk in range(4): a(f"ds_read_b128 v[{48+4*kk}:{51+4*kk}], v7 offset:{64*kk}")
        a("s_waitcnt lgkmcnt(0)")
        self.oproj_compute_publish(0)
        self.stamp(8)
        self.final_reduce(0)
        self.stamp(9)
        self.write_stamps()
        a("s_endpgm")
        a.label("L_roleC_end")

    def build(self, header):
        a = self.a
        a.raw(header)
        a.raw(f'.amdgcn_target "amdgcn-amd-amdhsa--gfx950"\n.text\n.globl {KN}_kernel\n.p2align 8\n.type {KN}_kernel,@function\n{KN}_kernel:')
        a("s_cmp_ge_u32 s2, 256\ns_cbranch_scc1 L_exit")
        a("s_load_dwordx16 s[4:19], s[0:1], 0\ns_load_dwordx8 s[20:27], s[0:1], 64\ns_load_dwordx4 s[28:31], s[0:1], 96")
        if self.stamps:
            for i in range(64, 96): a(f"s_mov_b32 s{i}, 0")
        self.stamp(0)
        a("v_lshrrev_b32 v2, 6, v0\nv_and_b32 v1, 63, v0\nv_readfirstlane_b32 s3, v2")
        a("v_and_b32 v3, 15, v0\nv_bfe_u32 v4, v0, 4, 2\nv_lshlrev_b32 v2, 4, v1")
        a(f"s_and_b32 {sH}, s2, 31\ns_mov_b32 s53, {sH}")
        a("s_cmp_lt_u32 s2, 32\ns_cbranch_scc1 L_roleH\ns_cmp_lt_u32 s2, 64\ns_cbranch_scc1 L_roleC")
        self.role_a()
        self.role_h()
        self.role_c()
        a.label("L_exit")
        a("s_endpgm")
        a.raw(f'''.section .rodata,"a"
.p2align 6
.amdhsa_kernel {KN}_kernel
  .amdhsa_next_free_vgpr 512
  .amdhsa_next_free_sgpr 102
  .amdhsa_accum_offset 256
  .amdhsa_group_segment_fixed_size 0
  .amdhsa_kernarg_size 112
  .amdhsa_user_sgpr_count 2
  .amdhsa_user_sgpr_kernarg_segment_ptr 1
  .amdhsa_system_sgpr_workgroup_id_x 1
.end_amdhsa_kernel''')
        return a.text()

def header(stamps):
    ref = open(os.path.join(os.path.dirname(os.path.abspath(__file__)), '..', KN + '.s.ref')).read().split('\n')
    top = [l for l in ref if l.startswith(';') and '@launch' not in l][:17]
    h = '\n'.join(top) + '\n; @launch grid=(256,1,1) block=(256,1,1) lds=163840'
    if stamps: h += '\n; groups=128,256'
    h += '\n; generated by gen/gen.py (hand-written generator)'
    return h

if __name__ == '__main__':
    import argparse
    ap = argparse.ArgumentParser()
    ap.add_argument('-o', default=os.path.join(os.path.dirname(os.path.abspath(__file__)), '..', KN + '.s'))
    ap.add_argument('--stamps', action='store_true')
    ap.add_argument('--wq', default='')
    ap.add_argument('--opt', action='append', default=[])
    args = ap.parse_args()
    g = Gen(stamps=args.stamps, wq_flags=args.wq, opts={k.split('=')[0]: (k.split('=')[1] if k.startswith('pace') else int(k.split('=')[1])) if '=' in k else 1 for k in args.opt})
    t = g.build(header(args.stamps))
    open(args.o, 'w').write(t)
    print(args.o, len(t), 'bytes; auto nops', g.a.nops)
```

```python
import sys, os, math, struct
sys.path.insert(0, os.path.dirname(os.path.abspath(__file__)))
from asmlib import Asm

KN = "concat_heads__mha_block_cached__compressed_kv_cla__decode"
def f2u(x): return struct.unpack('<I', struct.pack('<f', x))[0]
LOG2E = 1.4426950408889634
SCALE = 128 ** -0.5
M24 = (1 << 32) // 24 + 1
M18 = (1 << 32) // 18 + 1

WS_APART, WS_QABS, WS_BO, WS_BML, WS_Y, WS_YPART = 0x800000, 0x100000, 0x200000, 0x300000, 0x400000, 0x80000
WS_QA, WS_CTR, WS_CTX, WS_UCTR = 0x500000, 0x520000, 0x530000, 0x528000
WS_STAMP = 0x10000000
OOB_WS = 0x20000000
DBG_S1, DBG_S2 = 128, 192
LDS_X = 131072
P_AX, P_K, P_V, P_WQ, P_WO, P_BX, P_CKV, P_BWQ, P_WUK, P_WUV, P_BWO, P_OUT, P_DBG, P_WS = [4 + 2 * i for i in range(14)]
SRD_A, SRD_B, SRD_C, SRD_WS, SRD_D = 32, 36, 40, 44, 48
sW, sH, sJ = 's3', 's52', 's53'
NSH, NSD = 8, 24

def xs(T): return {36: 20, 18: 12}[T]

def mix(main, side, every, start=0):
    out, k = [], 0
    for i, m in enumerate(main):
        if i >= start and (i - start) % every == 0 and k < len(side):
            out.append(side[k]); k += 1
        out.append(m)
    return out + side[k:]

class Stream:
    def __init__(self, a, ahead):
        self.a, self.ahead, self.items, self.marks = a, ahead, [], []
    def add(self, texts):
        self.items += texts
        return len(self.items)
    def issue(self, upto):
        while len(self.marks) < min(upto, len(self.items)):
            self.a(self.items[len(self.marks)]); self.marks.append(self.a.mark())
    def need(self, n):
        self.issue(n)
        self.a.wait_for(self.marks[n - 1])
        self.issue(n + self.ahead)

class Gen:
    def __init__(self, stamps=False, wq_flags='', opts=None):
        self.a = Asm(); self.stamps = stamps; self.nst = 0; self.wq_flags = wq_flags
        self.o = opts or {}
        self.RING = self.o.get('ring', 2); self.NX = self.o.get('nx', 10); self.ST = 32
        self.EPI = self.o.get('epi', 1)
        d = self.o.get('drain', 1080008) % 1000000
        self.DRAIN = (d // 10000, d // 100 % 100, d % 100) if self.EPI and d else None
        if self.EPI == 2: self.DRAIN = (1, 0, 0)
        self.QS = self.o.get('qs', 2)
    def srd(self, d, p, nbytes):
        self.a(f"s_mov_b32 s{d}, s{p}\ns_mov_b32 s{d+1}, s{p+1}\ns_mov_b32 s{d+2}, {nbytes}\ns_mov_b32 s{d+3}, 0x20000")
    def S(self, d): return f"s[{d}:{d+3}]"
    def stamp(self, i):
        if self.stamps: self.a(f"s_memrealtime s[{64+2*i}:{65+2*i}]")
    def write_stamps(self):
        if not self.stamps: return
        a = self.a
        a("s_waitcnt lgkmcnt(0)")
        a(f"s_lshl_b32 s54, s2, 2\ns_add_u32 s54, s54, {sW}\ns_lshl_b32 s54, s54, 7\ns_add_u32 s54, s54, {WS_STAMP}")
        a("v_mov_b32 v2, 0")
        for i in range(8):
            for k in range(4): a(f"v_mov_b32 v{4+k}, s{64+4*i+k}")
            a(f"buffer_store_dwordx4 v[4:7], v2, {self.S(SRD_WS)}, s54 offen offset:{16*i}")
            a("s_nop 1")

    def selectors(self):
        a = self.a
        a("v_and_b32 v5, 1, v3")
        a("v_cmp_eq_u32 vcc, 1, v5")
        a("v_mov_b32 v5, 0x0c0c0100\nv_mov_b32 v6, 0x01000c0c\nv_cndmask_b32 v5, v5, v6, vcc")
        a("v_mov_b32 v6, 0x0c0c0302\nv_mov_b32 v7, 0x03020c0c\nv_cndmask_b32 v6, v6, v7, vcc")
        a("v_bfe_u32 v7, v3, 1, 2")
        a("v_mov_b32 v16, 0x0c0c0c0c")
        for q in range(4):
            a(f"v_cmp_eq_u32 vcc, {q}, v7")
            a(f"v_cndmask_b32 v{8+2*q}, v16, v5, vcc\nv_cndmask_b32 v{9+2*q}, v16, v6, vcc")

    def proj_mfma(self, ts, act, actp, tmp, acc, wreg, first):
        a = self.a
        for t in ts:
            for p in range(2):
                tb = tmp + ((2 * t + p) & 3) * 4
                src = act + p * actp + (t >> 1)
                for q in range(4):
                    a(f"v_perm_b32 v{tb+q}, v{src}, v{src}, v{8+2*q+(t&1)}")
                c = "0" if (first and t == ts[0]) else f"v[{acc+4*p}:{acc+4*p+3}]"
                a(f"v_mfma_f32_16x16x32_bf16 v[{acc+4*p}:{acc+4*p+3}], v[{tb}:{tb+3}], {wreg(t)}, {c}")

    def proj_store_partials(self, acc, va, base=LDS_X):
        a = self.a
        a(f"v_lshrrev_b32 v{va}, 1, v4\nv_lshlrev_b32 v{va}, 9, v{va}")
        a(f"v_lshl_add_u32 v{va}, v3, 5, v{va}")
        a(f"v_and_b32 v{va+1}, 1, v4\nv_lshl_add_u32 v{va}, v{va+1}, 4, v{va}")
        a(f"s_lshl_b32 s54, {sW}, 11\ns_add_u32 s54, s54, {base}\nv_add_u32 v{va}, s54, v{va}")
        a(f"ds_write_b128 v{va}, v[{acc}:{acc+3}]\nds_write_b128 v{va}, v[{acc+4}:{acc+7}] offset:1024")
        a("s_waitcnt lgkmcnt(0)\ns_barrier")

    def sum4_pack(self, va, off, tmp, dst):
        a = self.a
        for w in range(4):
            a(f"ds_read_b128 v[{tmp+8*w}:{tmp+8*w+3}], v{va} offset:{off+2048*w}")
            a(f"ds_read_b128 v[{tmp+8*w+4}:{tmp+8*w+7}], v{va} offset:{off+2048*w+16}")
        a("s_waitcnt lgkmcnt(0)")
        for e in range(8):
            a(f"v_add_f32 v{tmp+e}, v{tmp+e}, v{tmp+8+e}\nv_add_f32 v{tmp+16+e}, v{tmp+16+e}, v{tmp+24+e}")
        for e in range(8): a(f"v_add_f32 v{tmp+e}, v{tmp+e}, v{tmp+16+e}")
        for q in range(4): a(f"v_cvt_pk_bf16_f32 v{dst+q}, v{tmp+2*q}, v{tmp+2*q+1}")

    def operand_from_partials(self, va, tmp, dst):
        a = self.a
        a(f"v_lshrrev_b32 v{va}, 2, v3\nv_lshlrev_b32 v{va}, 9, v{va}\nv_lshl_add_u32 v{va}, v4, 5, v{va}")
        a(f"v_add_u32 v{va}, {LDS_X}, v{va}")
        for kk in range(4): self.sum4_pack(va, kk * 128, tmp, dst + 4 * kk)

    def x_loads(self, srd, act, T=36, row0=0):
        a = self.a
        a(f"v_lshrrev_b32 v5, 3, v3\nv_mul_u32_u24 v5, 1152, v5\nv_mul_u32_u24 v6, {2*T}, v4\nv_add_u32 v5, v5, v6")
        a(f"s_mul_i32 s54, {sW}, {8*T}")
        if row0: a(f"s_add_u32 s54, s54, {2*row0}")
        for p in range(2):
            r = act + xs(T) * p
            for k in range(T // 8):
                a(f"buffer_load_dwordx4 v[{r+4*k}:{r+4*k+3}], v5, {self.S(srd)}, s54 offen offset:{2304*p+16*k}")
            k = T // 8
            if T == 36: a(f"buffer_load_dwordx2 v[{r+4*k}:{r+4*k+1}], v5, {self.S(srd)}, s54 offen offset:{2304*p+16*k}")
            else: a(f"buffer_load_dword v{r+4*k}, v5, {self.S(srd)}, s54 offen offset:{2304*p+16*k}")

    def code_prefetch(self, start, end, n, junk=122):
        a = self.a
        lab = a.newlabel('pc')
        a("s_getpc_b64 s[56:57]")
        a.label(lab)
        a(f"s_sub_u32 s56, s56, {lab}-{start}\ns_subb_u32 s57, s57, 0")
        a(f"v_lshlrev_b32 v5, 7, v0")
        for i in range(n):
            a(f"v_min_u32 v6, {end}-{start}-4, v5")
            a(f"global_load_dword v{junk}, v6, s[56:57]")
            if i + 1 < n: a("v_add_u32 v5, 32768, v5")

    def kreg(self, t): return 64 + 16 * t
    def a_loads(self, t, which):
        a = self.a
        if 'K' in which:
            for j in range(4):
                r = self.kreg(t) + 4 * j
                a(f"buffer_load_dwordx4 v[{r}:{r+3}], v2, {self.S(SRD_A)}, s60 offen offset:{1024*j} nt")
        if 'V' in which:
            for j in range(4):
                r = 16 * t + 4 * j
                a(f"buffer_load_dwordx4 a[{r}:{r+3}], v2, {self.S(SRD_B)}, s60 offen offset:{1024*j} nt")

    def a_body(self, t, ring, drain=0):
        a = self.a
        R = self.RING
        D = "row_mask:0xf bank_mask"
        kb = self.kreg(t)
        noat, nocomp = self.o.get('noat'), self.o.get('nocomp')
        N = 8 if noat else 9
        def refill_k():
            vr = 48 + t
            if noat: a("s_mov_b32 s54, s16\ns_cmp_ge_u32 s58, s59\ns_cselect_b32 s55, 24, 0\ns_add_u32 s16, s16, s55")
            else: a(f"v_readfirstlane_b32 s54, v{vr}\nv_mov_b32 v{vr}, 1")
            a("s_cmp_ge_u32 s58, s61\ns_cselect_b32 s55, s57, s53")
            a("s_lshl_b32 s54, s54, 12\ns_add_u32 s60, s54, s99")
            a("s_cmp_lt_u32 s58, s59\ns_cselect_b32 s60, s58, s60\ns_cselect_b32 s54, 0, s54\ns_cselect_b64 s[6:7], s[8:9], s[10:11]")
            if self.EPI == 2: a(f"s_cmp_ge_u32 s54, 0x100000\ns_cbranch_scc1 L_adrain{t}")
            elif self.DRAIN: a(f"s_cmp_ge_u32 s54, s19\ns_cbranch_scc1 L_adrain{t}")
            a(f"s_add_u32 s58, s58, {self.STEP}\ns_and_b32 s60, s60, s6\ns_or_b32 s60, s60, s7")
            if self.EPI != 2: a("s_cmp_lt_u32 s54, 0x100000\ns_cselect_b32 s60, s60, 0x8000000\ns_cselect_b32 s55, s55, s53\ns_addc_u32 s62, s62, -1")
            if not noat: a(f"buffer_atomic_add v{vr}, v18, {self.S(SRD_WS)}, s55 offen sc0")
            self.a_loads(t, 'K')
        if ring: a(f"s_waitcnt vmcnt({N*(R-1)+4})")
        n1, n2, n3 = self.DRAIN or (0, 0, 0)
        if drain == 2:
            self.epi_loads(n1, n1 + n2)
            a(f"s_waitcnt vmcnt({4+n1+n2})")
        if nocomp:
            if ring:
                refill_k(); a(f"s_waitcnt vmcnt({N*R-4})"); self.a_loads(t, 'V')
            return
        for e in range(4 if drain != 1 else 0):
            for j in range(4):
                c = "0" if e == 0 else f"v{20+j}"
                a(f"v_dot2_f32_bf16 v{20+j}, v{kb+4*j+e}, v{4+e}, {c}")
        if ring: refill_k()
        if drain == 1 and self.EPI == 2: a(f"buffer_atomic_add v31, v18, {self.S(SRD_WS)}, s21 offen sc0")
        elif drain == 1: self.epi_loads(0, n1)
        if drain == 2: self.epi_loads(n1 + n2, n1 + n2 + n3)
        a(f"v_add_f32_dpp v24, v20, v20 row_ror:8 {D}:0x3\nv_add_f32_dpp v25, v22, v22 row_ror:8 {D}:0x3")
        a(f"v_add_f32_dpp v24, v21, v21 row_ror:8 {D}:0xc\nv_add_f32_dpp v25, v23, v23 row_ror:8 {D}:0xc")
        a(f"v_add_f32_dpp v26, v24, v24 row_shl:4 {D}:0x5\nv_add_f32_dpp v26, v25, v25 row_shr:4 {D}:0xa")
        a(f"v_add_f32_dpp v26, v26, v26 quad_perm:[1,0,3,2] {D}:0xf")
        a(f"v_add_f32_dpp v26, v26, v26 quad_perm:[2,3,0,1] {D}:0xf")
        a.c("scores rounded as the reference does: bf16(bf16(q.k) * scale)")
        a("v_cvt_pk_bf16_f32 v26, v26, v26\nv_and_b32 v26, s98, v26\nv_mul_f32 v26, s96, v26")
        a("v_cvt_pk_bf16_f32 v26, v26, v26\nv_and_b32 v26, s98, v26")
        a.c("running max")
        a(f"v_max_f32_dpp v27, v26, v26 row_ror:4 {D}:0xf")
        a(f"v_max_f32_dpp v27, v27, v27 row_ror:8 {D}:0xf")
        a("v_mov_b32 v28, v27\nv_permlane16_swap_b32 v27, v28\nv_max_f32 v27, v27, v28")
        a("v_mov_b32 v28, v27\nv_permlane32_swap_b32 v27, v28\nv_max3_f32 v27, v27, v28, v16")
        a("v_sub_f32 v28, v16, v27\nv_sub_f32 v29, v26, v27\nv_mul_f32 v28, s97, v28\nv_mul_f32 v29, s97, v29")
        a("v_exp_f32 v28, v28\nv_exp_f32 v29, v29\nv_mov_b32 v16, v27")
        a("v_fma_f32 v17, v17, v28, v29\nv_cvt_pk_bf16_f32 v29, v29, v29")
        for r in range(4): a(f"v_mul_f32 v{12+r}, v{12+r}, v28")
        if ring: a(f"s_waitcnt vmcnt({N*R-4})")
        if drain: a(f"s_waitcnt vmcnt({N+n1 if drain == 1 else n1+n2+n3})")
        for j in range(4):
            bank = [0, 2, 1, 3][j]
            tb = 32 + 4 * j
            for q in range(4):
                a(f"v_and_b32_dpp v{tb+q}, v29, v{8+q} row_newbcast:{4*bank} {D}:0xf")
        for j in range(4):
            tb = 32 + 4 * j
            a(f"v_mfma_f32_16x16x32_bf16 v[12:15], v[{tb}:{tb+3}], a[{16*t+4*j}:{16*t+4*j+3}], v[12:15]")
        if ring: self.a_loads(t, 'V')

    def wq_loads(self, ts, srd, flags, base=112):
        a = self.a
        for t in ts:
            a(f"buffer_load_dwordx4 a[{base+4*t}:{base+3+4*t}], v120, {self.S(srd)}, s61 offen {flags}")
            a("s_add_u32 s61, s61, 8192")

    def wq_addr(self, T=36, row0=0):
        a = self.a
        a(f"v_mul_u32_u24 v120, {T*8192}, v4\nv_lshl_add_u32 v120, v3, 4, v120")
        a(f"s_mul_i32 s61, {sW}, {4*T*8192}\ns_lshl_b32 s54, {sH}, 8\ns_add_u32 s61, s61, s54")
        if row0: a(f"s_add_u32 s61, s61, {row0*8192}")

    def shared_sel(self, d, g):
        m = self.o.get('dsel', 1)
        if m == 0: self.a(f"s_mov_b32 {d}, 1")
        elif m == 1: self.a(f"s_add_u32 {d}, {g}, {sW}\ns_and_b32 {d}, {d}, 3")
        elif m == 2: self.a(f"s_mov_b32 {d}, {sW}")
        elif m == 3: self.a(f"s_lshr_b32 {d}, {g}, 1\ns_add_u32 {d}, {d}, {sW}\ns_and_b32 {d}, {d}, 3")
    def is_shared(self):
        self.a(f"s_lshr_b32 s55, {sH}, 2")
        self.shared_sel("s55", "s55")
        self.a(f"s_and_b32 s54, {sH}, 3\ns_cmp_eq_u32 s54, s55")
    def a_pack(self, d, ml):
        a = self.a
        D = "row_mask:0xf bank_mask"
        a(f"v_add_f32_dpp v17, v17, v17 row_ror:4 {D}:0xf")
        a(f"v_add_f32_dpp v17, v17, v17 row_ror:8 {D}:0xf")
        a("v_mov_b32 v28, v17\nv_permlane16_swap_b32 v17, v28\nv_add_f32 v17, v17, v28")
        a(f"v_mov_b32 v28, v17\nv_permlane32_swap_b32 v17, v28\nv_add_f32 v{ml+1}, v17, v28")
        if ml != 16: a(f"v_mov_b32 v{ml}, v16")
        a(f"v_cvt_pk_bf16_f32 v{d}, v12, v13\nv_cvt_pk_bf16_f32 v{d+1}, v14, v15")
    def a_reset(self):
        for r in range(4): self.a(f"v_mov_b32 v{12+r}, 0")
        self.a("v_mov_b32 v16, 0xff800000\nv_mov_b32 v17, 0")
    def epi_setup(self):
        a = self.a
        a(f"s_bitcmp1_b32 s23, 0\ns_cselect_b32 s{SRD_C}, s{P_BWO}, s{P_WO}\ns_cselect_b32 s{SRD_C+1}, s{P_BWO+1}, s{P_WO+1}\ns_cselect_b32 s25, {WS_YPART}, 0\ns_add_u32 s25, s25, {WS_Y}")
        a(f"s_mov_b32 s{SRD_C+2}, {32 * 147456}\ns_mov_b32 s{SRD_C+3}, 0x20000")
        a(f"s_lshr_b32 s54, s23, 1\ns_mul_i32 s54, s54, 3\ns_add_u32 s54, s54, {sW}\ns_and_b32 s23, s23, 1")
        a("s_mul_i32 s24, s26, 147456\ns_lshl_b32 s55, s54, 7\ns_add_u32 s24, s24, s55")
        a("s_lshl_b32 s54, s54, 13\ns_lshl_b32 s55, s26, 7\ns_add_u32 s54, s54, s55\ns_add_u32 s25, s25, s54")
        a(f"s_lshl_b32 s27, s26, 10\ns_add_u32 s27, s27, {WS_CTX}")
        a(f"s_lshl_b32 s22, s26, 2\ns_add_u32 s22, s22, {sW}\ns_lshl_b32 s22, s22, 13\ns_add_u32 s22, s22, {WS_APART}")
        a("s_lshr_b32 s55, s26, 2")
        self.shared_sel("s55", "s55")
        a("s_and_b32 s54, s26, 3\ns_cmp_eq_u32 s54, s55\ns_cselect_b32 s54, 7, 1\ns_cselect_b32 s55, 5, 1\ns_cselect_b32 s26, 2, 0\ns_or_b32 s23, s23, s26")
        a("v_and_b32 v30, s54, v3\nv_min_u32 v30, s55, v30\nv_lshl_add_u32 v30, v30, 2, v4\nv_lshlrev_b32 v30, 4, v30\nv_add_u32 v30, 6144, v30")
        a("v_lshrrev_b32 v19, 3, v3\nv_lshl_add_u32 v19, v19, 2, v4\nv_mul_u32_u24 v19, 9216, v19\nv_and_b32 v5, 7, v3\nv_lshl_add_u32 v19, v5, 4, v19")
    def epi_head(self):
        self.a("s_sub_u32 s23, s2, 64\ns_and_b32 s26, s23, 7\ns_lshr_b32 s23, s23, 3\ns_mul_i32 s27, s23, 43\ns_lshr_b32 s27, s27, 8")
        self.a("s_lshl_b32 s26, s26, 2\ns_add_u32 s26, s26, s27\ns_mul_i32 s27, s27, 6\ns_sub_u32 s23, s23, s27")
    def epi_loads(self, lo=0, hi=16, srd=SRD_C):
        for k in range(lo, hi):
            e = k & 7
            adv = {3: 4608, 7: 73728 - 4608}.get(e)
            if self.o.get('wlin'):
                if k == 0: self.a("s_lshr_b32 s59, s25, 13\ns_and_b32 s59, s59, 15\ns_mul_i32 s59, s59, 16256\ns_add_u32 s24, s24, s59")
                self.a(f"buffer_load_dwordx4 v[{128+4*k}:{131+4*k}], v2, {self.S(srd)}, s24 offen offset:{1024*(e&3)} nt" + ("\ns_add_u32 s24, s24, 4096" if adv else ""))
                continue
            self.a(f"buffer_load_dwordx4 v[{128+4*k}:{131+4*k}], v19, {self.S(srd)}, s24 offen offset:{1152*(e&3)} nt" + (f"\ns_add_u32 s24, s24, {adv}" if adv and k != 15 else ""))
    def epi_addr(self, rot=False):
        self.stamp(12)
        self.a("v_and_b32 v3, 15, v1\nv_lshrrev_b32 v4, 4, v1\ns_mov_b32 s60, 0x05040100\ns_mov_b32 s61, 0x07060302")
        if rot: self.a("v_add_u32 v0, s23, v4\nv_and_b32 v0, 3, v0")
        self.a(f"v_mul_u32_u24 v0, {18*4096}, v{0 if rot else 4}\nv_bfe_u32 v5, v1, 2, 1\nv_lshl_add_u32 v0, v5, 12, v0\nv_and_b32 v5, 3, v1\nv_lshl_add_u32 v0, v5, 5, v0")
        self.a("v_bfe_u32 v5, v1, 3, 1\nv_lshl_add_u32 v0, v5, 4, v0")
    def epi_tr(self, later, mid):
        early = sum(self.DRAIN or ()) if self.EPI != 2 else 0
        for kk in range(2):
            for q in range(4):
                last = 8 * kk + 2 * q + 1
                if (kk, q) == (0, 0): self.stamp(10)
                self.a(f"s_waitcnt vmcnt({later + 15 - last + (mid if last < early else 0)})")
                if (kk, q) == (0, 0): self.stamp(11)
                if (kk, q) == (1, 0): self.stamp(9)
                for j in range(8):
                    lo = 128 + 32 * kk + 8 * q + (j >> 1)
                    self.a(f"v_perm_b32 v{64+32*kk+4*j+q}, v{lo+4}, v{lo}, s{60+(j&1)}")
    def epi_mfma(self, lds, ac=224):
        a = self.a
        mf = lambda kk, j: f"v_mfma_f32_16x16x32_bf16 v[{ac+4*j}:{ac+3+4*j}], v[{48+4*kk}:{51+4*kk}], v[{64+32*kk+4*j}:{67+32*kk+4*j}], " + ("0" if kk == 0 else f"v[{ac+4*j}:{ac+3+4*j}]")
        ad = lambda j: f"v_add_f32_dpp v{56+(j&3)}, v{ac+4*j+1-(j>>2)}, v{ac+4*j+(j>>2)} row_ror:8 row_mask:0xf bank_mask:{0x3 if j < 4 else 0xc:#x}"
        if lds: a("s_waitcnt lgkmcnt(1)")
        for j in range(8): a(mf(0, j))
        if lds: a("s_waitcnt lgkmcnt(0)")
        for j in range(8):
            a(mf(1, j))
            a(f"s_nop 0\n" + ad(j - 3) if j >= 3 else "s_nop 1")
        for j in range(5, 8): a(ad(j) + f"\nv_min_u32 v{56+j-5}, -2, v{56+j-5}")
        a(f"v_min_u32 v59, -2, v59\nbuffer_store_dwordx4 v[56:59], v0, {self.S(SRD_WS)}, s25 offen sc1")
        a.label("L_eend" + "AB"[not lds])
        self.stamp(15)
        self.write_stamps()
        a("s_endpgm")
    def epi_rest(self):
        a = self.a
        early = sum(self.DRAIN or ())
        if early < 16:
            lab = a.newlabel('enone')
            a(f"s_cmp_eq_u32 {sW}, 3\ns_cbranch_scc1 {lab}")
            self.epi_loads(early, 16)
            a.label(lab)
        self.epi_addr()
    def epilogue(self):
        a = self.a
        a("s_mov_b32 s58, s22\ns_add_u32 s59, s22, 4096\ns_cmp_eq_u32 s23, 2\ns_cbranch_scc1 L_eshared\ns_cmp_lg_u32 s23, 0\ns_cbranch_scc1 L_epiB")
        self.combine2(NSH, True)
        a("s_branch L_emerged")
        a.label("L_eshared")
        self.combine2(NSD, True)
        a.label("L_emerged")
        a("ds_write_b64 v5, v[224:225]")
        a(f"s_cmp_eq_u32 {sW}, 3\ns_waitcnt lgkmcnt(0)\ns_barrier\ns_cbranch_scc1 L_eendA")
        for kk in range(2): a(f"ds_read_b128 v[{48+4*kk}:{51+4*kk}], v7 offset:{128*kk}")
        self.epi_mfma(True)
        a.label("L_epiB")
        a(f"s_cmp_eq_u32 {sW}, 3\ns_cbranch_scc1 L_eendB")
        a("v_bfe_u32 v6, v1, 2, 2\nv_lshlrev_b32 v6, 6, v6\nv_and_b32 v5, 48, v1\nv_add_u32 v6, v6, v5\nv_and_b32 v5, 1, v1\nv_lshl_add_u32 v6, v5, 8, v6")
        loads = [(f"buffer_load_dwordx4 v[{48+4*kk}:{51+4*kk}], v6, {self.S(SRD_WS)}, s27 offen offset:{512*kk} sc1", 48 + 4 * kk) for kk in range(2)]
        for t, r in loads: a(t)
        self.epi_rest()
        self.epi_tr(0, 2)
        self.stamp(13)
        a("s_waitcnt vmcnt(0)")
        self.masked_poll(loads, 236, 1, pre=True)
        self.stamp(14)
        self.epi_mfma(False)
    def dyn_setup(self):
        a = self.a
        assert self.o.get('dsel', 1) == 1
        self.srd(SRD_C, P_WO, 32 * 147456); self.srd(SRD_D, P_BWO, 32 * 147456)
        a(f"s_mul_i32 s24, s26, 147456\ns_lshl_b32 s25, s26, 7\ns_add_u32 s21, s25, {WS_UCTR}\ns_add_u32 s25, s25, {WS_Y}")
        a(f"s_lshl_b32 s27, s26, 10\ns_add_u32 s27, s27, {WS_CTX}\ns_lshl_b32 s22, s26, 15\ns_add_u32 s22, s22, {WS_APART}")
        a("s_lshr_b32 s23, s26, 2\ns_sub_u32 s23, s26, s23\ns_and_b32 s23, s23, 3")
        a.c("lane (r, i): i < 8 slot 4 min(i, 5) + r of the shared pool, else slot 4 (i & 1) + r of home pool min((i - 8) / 2, 2)")
        a("v_min_u32 v30, 5, v3\nv_and_b32 v5, 1, v3\nv_cmp_gt_u32 vcc, 8, v3\nv_cndmask_b32 v30, v5, v30, vcc\nv_lshl_add_u32 v30, v30, 2, v4\nv_lshlrev_b32 v30, 4, v30")
        a("v_lshrrev_b32 v5, 1, v3\nv_max_u32 v5, 3, v5\nv_min_u32 v5, 6, v5\nv_add_u32 v5, s23, v5\nv_add_u32 v5, 1, v5\nv_and_b32 v5, 3, v5")
        a("v_lshl_add_u32 v30, v5, 13, v30\nv_add_u32 v30, 6144, v30\nv_mov_b32 v31, 1")
        a("v_lshrrev_b32 v19, 3, v3\nv_lshl_add_u32 v19, v19, 2, v4\nv_mul_u32_u24 v19, 9216, v19\nv_and_b32 v5, 7, v3\nv_lshl_add_u32 v19, v5, 4, v19")
    def dyn_epilogue(self):
        a = self.a
        D = "row_mask:0xf bank_mask"
        ws = self.S(SRD_WS)
        a("s_waitcnt vmcnt(1)\nv_readfirstlane_b32 s54, v31")
        if self.stamps: a("s_mul_i32 s76, s54, 10\ns_add_u32 s76, s76, s64")
        a("s_cmp_ge_u32 s54, 18\ns_cbranch_scc1 L_eendB\ns_lshl_b32 s55, s54, 7\ns_add_u32 s24, s24, s55\ns_lshl_b32 s55, s54, 13\ns_add_u32 s25, s25, s55")
        a("s_cmp_ge_u32 s54, 9\ns_cbranch_scc1 L_epiB")
        self.epi_loads()
        ml = f"buffer_load_dwordx4 v[40:43], v30, {ws}, s22 offen sc1"
        a(ml)
        self.epi_addr(True)
        a.c("pools in the order shared, home 0..2: s54, s55 (+4096), s56..s58")
        a("s_lshl_b32 s54, s23, 13")
        for j in range(3): a(f"s_add_u32 s{56+j}, s54, {8192*(j+1)}\ns_and_b32 s{56+j}, s{56+j}, 0x6000\ns_add_u32 s{56+j}, s{56+j}, s22")
        a("s_add_u32 s54, s54, s22\ns_add_u32 s55, s54, 4096\ns_mov_b32 s20, 0xff3fff3f\ns_mov_b32 s21, s20")
        for r in range(192, 240): a(f"v_mov_b32 v{r}, -1")
        for q in range(4): a(f"v_mov_b32_dpp v{12+q}, v{8+q} row_ror:8 {D}:0xf")
        a(f"s_lshl_b32 s59, {sW}, 10\nv_lshl_add_u32 v5, v3, 4, s59\nv_and_b32 v6, 1, v4\nv_lshl_add_u32 v5, v6, 3, v5\nv_lshrrev_b32 v6, 1, v4\nv_lshl_add_u32 v5, v6, 8, v5")
        a("v_lshrrev_b32 v7, 2, v3\nv_lshl_add_u32 v7, v7, 8, s59\nv_lshl_add_u32 v7, v4, 4, v7\nv_and_b32 v6, 1, v1\nv_lshl_add_u32 v7, v6, 6, v7")
        for p in range(7): a(f"s_mov_b64 s[{4+2*p}:{5+2*p}], -1")
        self.epi_tr(1, 0)
        self.stamp(13)
        a.label("L_elight")
        a(f"s_waitcnt vmcnt(0)\nv_cmp_ne_u32 vcc, -1, v40\ns_bcnt1_i32_b64 s59, vcc\ns_cmp_ge_u32 s59, {self.o.get('lt', 24)}\ns_cbranch_scc1 L_eheavy")
        a(f"s_sleep 2\n{ml}\ns_sub_u32 s101, s101, 1\ns_cbranch_scc0 L_elight\ns_mov_b32 s101, 0")
        a.c("each group of registers is read again for the lanes that still hold the cleared pattern; late results repeat what is there")
        a.label("L_eheavy")
        a("s_mov_b64 s[18:19], 0")
        src = [(54, 0), (54, 2048), (55, 0), (56, 0), (57, 0), (58, 0)]
        for p in range(7):
            a(f"s_mov_b64 exec, s[{4+2*p}:{5+2*p}]\ns_cbranch_execz L_eskip{p}")
            if p == 0: a(f"?v_max3_u32 v44, v40, v41, v42\n?v_max_u32 v44, v44, v43\n?v_cmpx_eq_u32 s[4:5], -1, v44\n?{ml}")
            else:
                r = 184 + 8 * p
                so, off = src[p - 1]
                a(f"?v_max3_u32 v44, v{r}, v{r+1}, v{r+2}\n?v_max3_u32 v45, v{r+3}, v{r+4}, v{r+5}\n?v_max3_u32 v44, v44, v{r+6}, v{r+7}\n?v_max_u32 v44, v44, v45")
                a(f"?v_cmpx_eq_u32 s[{4+2*p}:{5+2*p}], -1, v44")
                for k in range(2): a(f"?buffer_load_dwordx4 v[{r+4*k}:{r+4*k+3}], v2, {ws}, s{so} offen offset:{off+1024*k} sc1")
            a(f"?s_or_b64 s[18:19], s[18:19], s[{4+2*p}:{5+2*p}]")
            a.label(f"L_eskip{p}")
        a(f"s_mov_b64 exec, -1\ns_cmp_eq_u64 s[18:19], 0\ns_cbranch_scc1 L_eseen\n?s_waitcnt vmcnt({self.o.get('pw', 3)})\n?s_sub_u32 s101, s101, 1\n?s_cbranch_scc0 L_eheavy")
        a.label("L_eseen")
        self.stamp(14)
        def allred(op, r, src, t):
            o = [f"{op}_dpp v{r}, v{src}, v{src} quad_perm:[1,0,3,2] {D}:0xf", f"{op}_dpp v{r}, v{r}, v{r} quad_perm:[2,3,0,1] {D}:0x3", f"{op}_dpp v{r}, v{r}, v{r} row_half_mirror {D}:0x3"]
            for p in (16, 32): o += [f"v_mov_b32 v{t}, v{r}", f"v_permlane{p}_swap_b32 v{r}, v{t}", f"{op} v{r}, v{r}, v{t}"]
            return o
        a("v_cndmask_b32 v47, 0, v41, s[20:21]")
        for t in allred("v_max_f32", 44, 40, 45): a(t)
        a("v_sub_f32 v45, v40, v44\nv_mul_f32 v45, s97, v45\nv_exp_f32 v45, v45\nv_cvt_pk_bf16_f32 v46, v45, v45\nv_and_b32 v45, s98, v46\nv_mul_f32 v47, v47, v45")
        fm, prev = [], None
        for n, k in enumerate([8, 9, 10, 11, 0, 1, 2, 3, 4, 5, 6, 7]):
            tb = 240 + 4 * (n & 3)
            pos = 0 if k < 6 else (k - 4) // 2
            fm += [f"v_and_b32_dpp v{tb+q}, v46, v{8+4*(pos&1)+q} row_newbcast:{k if k < 6 else k + 2} {D}:0xf" for q in range(4)]
            if prev: fm.append(prev)
            ac = 20 + 4 * (pos >> 1)
            prev = f"v_mfma_f32_16x16x32_bf16 v[{ac}:{ac+3}], v[{tb}:{tb+3}], v[{192+4*k}:{195+4*k}], " + ("0" if k in (0, 8) else f"v[{ac}:{ac+3}]")
        side = allred("v_add_f32", 47, 47, 45) + ["v_rcp_f32 v47, v47"]
        side += [f"v_mov_b32_dpp v{28+(pos>>1)}, v47 row_newbcast:{0 if pos == 0 else 6 + 2*pos} row_mask:{0xc if pos & 1 else 0x3:#x} bank_mask:0xf" for pos in (2, 3, 0, 1)]
        for t in mix(fm, side, 4, 2): a(t)
        a("v_mul_f32 v24, v24, v29\n" + prev)
        for e in range(1, 4): a(f"v_mul_f32 v{24+e}, v{24+e}, v29")
        a("v_cvt_pk_bf16_f32 v24, v24, v25\nv_cvt_pk_bf16_f32 v25, v26, v27\nds_write_b64 v5, v[24:25] offset:512")
        for e in range(4): a(f"v_mul_f32 v{20+e}, v{20+e}, v28")
        a("v_cvt_pk_bf16_f32 v20, v20, v21\nv_cvt_pk_bf16_f32 v21, v22, v23\nds_write_b64 v5, v[20:21]")
        if self.stamps: a("s_waitcnt lgkmcnt(0)")
        for kk in range(2): a(f"ds_read_b128 v[{48+4*kk}:{51+4*kk}], v7 offset:{128*kk}")
        self.epi_mfma(True, 128)
        a.label("L_epiB")
        a(f"s_sub_u32 s24, s24, {9*128}\ns_add_u32 s25, s25, {WS_YPART - 9*8192}")
        a("v_bfe_u32 v6, v1, 2, 2\nv_lshlrev_b32 v6, 6, v6\nv_and_b32 v5, 48, v1\nv_add_u32 v6, v6, v5\nv_and_b32 v5, 1, v1\nv_lshl_add_u32 v6, v5, 8, v6")
        self.epi_loads(0, 16, SRD_D)
        loads = [(f"buffer_load_dwordx4 v[{48+4*kk}:{51+4*kk}], v6, {ws}, s27 offen offset:{512*kk} sc1", 48 + 4 * kk) for kk in range(2)]
        for t, r in loads: a(t)
        self.epi_addr()
        self.epi_tr(2, 0)
        self.stamp(13)
        a("s_waitcnt vmcnt(0)")
        self.masked_poll(loads, 236, 1, pre=True)
        self.stamp(14)
        self.epi_mfma(False, 128)
    def ctx_store(self, r0):
        a = self.a
        a(f"v_bfe_u32 v6, v1, 2, 2\nv_lshlrev_b32 v6, 6, v6\nv_and_b32 v5, 48, v1\nv_add_u32 v6, v6, v5\nv_and_b32 v5, 3, v1\nv_lshl_add_u32 v6, v5, 29, v6")
        a(f"s_lshl_b32 s54, {sH}, 10\ns_lshl_b32 s55, {sW}, 8\ns_add_u32 s54, s54, s55\ns_add_u32 s54, s54, {WS_CTX}")
        a(f"buffer_store_dwordx4 v[{r0}:{r0+3}], v6, {self.S(SRD_WS)}, s54 offen sc1")
    def a_take_q(self, tag, so):
        a = self.a
        a.label(f"L_aq{tag}")
        a(f"v_max3_u32 v20, v60, v61, v62\nv_max_u32 v20, v20, v63\nv_cmp_eq_u32 vcc, -1, v20\ns_cbranch_vccz L_aq{tag}_ok")
        c = a.vm_count; a.vm_count = False
        a(f"?buffer_load_dwordx4 v[60:63], v59, {self.S(SRD_WS)}, {so} offen sc1\n?s_waitcnt vmcnt(0)")
        a.vm_count = c
        a(f"?s_sub_u32 s101, s101, 1\n?s_cbranch_scc0 L_aq{tag}\n?s_mov_b32 s101, 0")
        a.label(f"L_aq{tag}_ok")
        for r in range(4): a(f"v_mov_b32 v{20+r}, v{60+r}")
        for r in range(4): a(f"v_permlane16_swap_b32 v{60+r}, v{20+r}")
        for r in range(4): a(f"v_add_f32 v{60+r}, v{60+r}, v{20+r}")
        a("v_cvt_pk_bf16_f32 v4, v60, v61\nv_cvt_pk_bf16_f32 v5, v62, v63\nv_mov_b32 v6, v4\nv_mov_b32 v7, v5")
        a("v_permlane32_swap_b32 v4, v6\nv_permlane32_swap_b32 v5, v7")

    def role_a(self):
        a = self.a
        R, NX, ST = self.RING, self.NX, self.ST
        assert R == 2 and R + NX <= 12 and ST >= NX + 2 * R and (ST - NX) % R == 0
        il = self.o.get('il', 1)
        STEP = self.STEP = 32768 if il else 4096
        a.label("L_roleA")
        if self.o.get('noA'): a("s_endpgm")
        a.vm_reset()
        a.c("24 workgroups per group of 4 heads: 8 each own a fixed eighth of a home head, then all share head 4g+1 (s52 home, s96 shared, s97 slot)")
        a(f"s_sub_u32 s54, s2, 64\ns_mul_hi_u32 s96, s54, {M24}\ns_mul_i32 s56, s96, 24\ns_sub_u32 s97, s54, s56")
        a.c("speed only: every pool gets the same mix of workgroup positions and wave slots")
        if self.o.get('gmix', 0): a("s_add_u32 s96, s96, s97\ns_and_b32 s96, s96, 7")
        if self.o.get('wmix', 1): a(f"s_lshr_b32 s55, s97, 3\ns_add_u32 {sW}, {sW}, s97\ns_add_u32 {sW}, {sW}, s55\ns_and_b32 {sW}, {sW}, 3")
        if self.stamps: a("s_mul_i32 s2, s96, 24\ns_add_u32 s2, s2, s97\ns_add_u32 s2, s2, 64")
        self.shared_sel("s56", "s96")
        a(f"s_lshr_b32 s55, s97, 3\ns_and_b32 {sJ}, s97, 7\ns_lshl_b32 s96, s96, 2\ns_add_u32 s55, s55, s56\ns_add_u32 s55, s55, 1\ns_and_b32 s55, s55, 3")
        a(f"s_add_u32 {sH}, s96, s55\ns_add_u32 s96, s96, s56")
        a.c("s58 next static offset, s59 static end, s61 atomic threshold, s99 rotation of the shared pool, s100 base of the static part")
        a(f"s_lshl_b32 s100, {sW}, 25\ns_lshl_b32 s55, {sH}, 20\ns_add_u32 s100, s100, s55\ns_lshl_b32 s55, {sJ}, {12 if il else 17}\ns_add_u32 s100, s100, s55")
        if il: a(f"s_lshl_b32 s58, {sH}, 2\ns_add_u32 s58, s58, {sW}\ns_mul_i32 s58, s58, {self.o.get('rot', 5)*STEP}")
        else: a(f"s_lshl_b32 s58, s54, 2\ns_add_u32 s58, s58, {sW}\ns_mul_i32 s58, s58, {self.o.get('rot', 5)*STEP}")
        a(f"s_add_u32 s59, s58, {ST*STEP}\ns_sub_u32 s61, s59, {R*STEP}")
        a(f"s_and_b32 s99, s96, 28\ns_add_u32 s99, s99, {sW}\ns_mul_i32 s99, s99, {self.o.get('rotd', 37)*4096}")
        a(f"s_mov_b32 s63, {sJ}")
        if not self.o.get('nopf'): self.code_prefetch("L_roleA", "L_roleA_end", 1, junk=56)
        a(f"s_mov_b32 s53, {OOB_WS}\nv_mov_b32 v18, s53\nv_cmp_eq_u32 vcc, 0, v1\nv_cndmask_b32 v18, v18, v1, vcc")
        if self.o.get('st0'): self.stamp(13)
        a("s_waitcnt lgkmcnt(0)")
        if self.o.get('st0'): self.stamp(14)
        self.srd(SRD_A, P_K, 0x8000000); self.srd(SRD_B, P_V, 0x8000000); self.srd(SRD_WS, P_WS, 0x20000000)
        SM = 0xf8000 if il else 0x1f000
        marks = []
        def T(t, ring):
            while a.vm - a.vm_done + 9 > 63:
                a.wait_for([m for m in marks if m > a.vm_done][0])
            if ring and not self.o.get('noat'): a(f"buffer_atomic_add v{48+t}, v18, {self.S(SRD_WS)}, s53 offen sc0")
            a(f"s_and_b32 s60, s58, {SM}\ns_or_b32 s60, s60, s100\ns_add_u32 s58, s58, {STEP}")
            self.a_loads(t, 'KV')
            marks.append(a.mark())
        order = [(R + i, False) for i in range(NX)] + [(i, True) for i in range(R)]
        FP, GP = self.o.get('fpos', 6), self.o.get('gpos', 9)
        for k, (t, ring) in enumerate(order[:FP]):
            T(t, ring)
            if self.o.get('st0') and k == 0:
                self.stamp(15)
                if self.o['st0'] == 2: a("s_waitcnt vmcnt(7)"); self.stamp(12); a("s_waitcnt vmcnt(0)"); self.stamp(11); continue
            if self.o.get('st0') == 2: continue
            if k in (1, 3): self.stamp(11 + k // 2)
        self.stamp(8)
        a(f"s_lshl_b32 s54, {sH}, 2\ns_lshl_b32 s55, s96, 2\nv_mov_b32 v58, s54\nv_mov_b32 v57, s55\nv_cndmask_b32 v58, v58, v57, vcc")
        a.c("cached reads of monotonic flags, off the vector path; the slow path re-reads coherently")
        if self.EPI:
            self.epi_head()
            a(f"s_lshl_b32 s27, s26, 2\nv_writelane_b32 v58, s27, 1\ns_load_dword s17, s[{P_DBG}:{P_DBG+1}], s27")
        a(f"s_load_dword s18, s[{P_DBG}:{P_DBG+1}], s54\ns_load_dword s19, s[{P_DBG}:{P_DBG+1}], s55")
        for t, ring in order[FP:GP]: T(t, ring)
        a.c("setup while waiting: PV masks v[8:11], acc v[12:15], m v16, l v17, q address v59, store address v3")
        self.pv_masks()
        if self.EPI == 2: self.dyn_setup()
        elif self.EPI: self.epi_setup()
        self.a_reset()
        a("v_lshrrev_b32 v5, 1, v4\nv_lshlrev_b32 v59, 5, v3\nv_lshl_add_u32 v59, v5, 4, v59")
        a("v_and_b32 v5, 1, v4\nv_lshl_add_u32 v59, v5, 11, v59")
        a.c("final store: row 0 home O, row 1 shared O, lane 32 / 48 their (m, l); pool (h, b) at 8 KB stride: slots of 256 B, (m, l) from 6144")
        a(f"s_lshl_b32 s54, {sH}, 2\ns_add_u32 s54, s54, {sW}\ns_lshl_b32 s54, s54, 13\ns_lshl_b32 s55, s96, 2\ns_add_u32 s55, s55, {sW}\ns_lshl_b32 s55, s55, 13")
        a("v_cmp_eq_u32 vcc, 1, v5\nv_mov_b32 v6, s54\nv_mov_b32 v7, s55\nv_cndmask_b32 v6, v6, v7, vcc")
        a("v_mov_b32 v20, s63\nv_mov_b32 v7, s97\nv_cndmask_b32 v7, v20, v7, vcc")
        a("v_lshl_add_u32 v20, v7, 4, v3\nv_lshl_add_u32 v20, v20, 4, v6")
        a("v_lshl_add_u32 v21, v7, 4, v6\nv_add_u32 v21, 6144, v21\nv_mov_b32 v7, s53\nv_cmp_eq_u32 vcc, 0, v3\nv_cndmask_b32 v21, v7, v21, vcc")
        a("v_cmp_gt_u32 vcc, 32, v1\nv_cndmask_b32 v3, v21, v20, vcc")
        a.c("s[8:9] / s[10:11]: (mask, base) of the static / shared tiles; s12 q2 address, s13 second slot, s14 next event, s15 switch point")
        a(f"s_mov_b32 s8, {SM}\ns_mov_b32 s9, s100\ns_mov_b32 s10, 0xff000\ns_lshl_b32 s11, {sW}, 25\ns_lshl_b32 s54, s96, 20\ns_add_u32 s11, s11, s54")
        a(f"s_lshl_b32 s57, s96, 2\ns_add_u32 s57, s57, {sW}\ns_lshl_b32 s57, s57, 7\ns_add_u32 s57, s57, {WS_CTR}")
        a(f"s_lshl_b32 s54, {sW}, 9\ns_add_u32 s54, s54, {WS_QA}\ns_lshl_b32 s56, {sH}, 12\ns_add_u32 s56, s56, s54\ns_lshl_b32 s12, s96, 12\ns_add_u32 s12, s12, s54")
        a("s_mov_b32 s13, 0")
        if self.o.get('noat'): a("s_mov_b32 s16, s97")
        a(f"s_add_u32 s15, s59, {R*STEP}\ns_sub_u32 s14, s15, {2*R*STEP}")
        a(f"s_mov_b32 s96, {f2u(SCALE)}\ns_mov_b32 s97, {f2u(LOG2E)}\ns_mov_b32 s98, 0xffff0000")
        a(f"s_mov_b32 s62, {R}\ns_mov_b32 s101, " + str(self.o.get("spin", 100000)))
        self.stamp(9)
        a("s_waitcnt lgkmcnt(0)")
        self.stamp(1)
        if self.EPI: a("s_min_u32 s18, s18, s17")
        if not self.o.get('noflag'): a("s_min_u32 s18, s18, s19\ns_cmp_lt_u32 s18, 2\ns_cbranch_scc1 L_aflag")
        a.label("L_aflag_ok")
        if self.DRAIN and self.EPI != 2: a(f"s_cmp_eq_u32 {sW}, 3\ns_cselect_b32 s19, -1, 0x100000")
        if not self.o.get('noq'): a(f"buffer_load_dwordx4 v[60:63], v59, {self.S(SRD_WS)}, s56 offen sc1")
        mG = a.mark()
        for t, ring in order[GP:]: T(t, ring)
        self.stamp(10)
        a.wait_for(mG)
        self.stamp(2)
        if self.o.get('noq'):
            for r in range(4): a(f"v_mov_b32 v{60+r}, 0")
        self.a_take_q(1, "s56")
        a("s_mov_b32 s56, 1")
        self.stamp(3)
        a.vm_count = False
        ext = [[] for _ in range(R)]
        for i in range(NX): ext[i * R // NX].append(R + i)
        last_ext = max([s for s in range(R) if ext[s]] + [-1])
        a.label("L_aloop")
        for s in range(R):
            self.a_body(s, True)
            if self.EPI != 2: a("s_cmp_eq_u32 s62, 0\ns_cbranch_scc1 L_adone")
            if ext[s]:
                a(f"s_cmp_lg_u32 s56, 0\ns_cbranch_scc1 L_aext{s}")
                a.label(f"L_aback{s}")
        a("s_cmp_lg_u32 s58, s14\ns_cbranch_scc1 L_aloop")
        a.c("events: fetch q of the shared head; later publish the home partial and switch over")
        a("s_cmp_eq_u32 s14, s15\ns_cbranch_scc1 L_aswitch")
        if not self.o.get('noq'): a(f"buffer_load_dwordx4 v[60:63], v59, {self.S(SRD_WS)}, s12 offen sc1")
        if self.o.get('wt'): a(f"s_mov_b64 exec, {self.o['wt']}\nbuffer_load_dword v31, v19, {self.S(SRD_C)}, s24 offen nt\ns_mov_b64 exec, -1")
        a("s_mov_b32 s14, s15\ns_branch L_aloop")
        a.label("L_aswitch")
        a.settle()
        self.a_pack(52, 50)
        self.a_reset()
        a("s_mov_b32 s13, 1\ns_cmp_eq_u32 s62, 0\ns_cbranch_scc1 L_adone")
        self.a_take_q(2, "s12")
        self.stamp(7)
        if self.DRAIN:
            a("s_cmp_lg_u32 s62, 3\ns_cbranch_scc1 L_aloop\ns_branch L_alast0")
            a.label("L_adrain1")
            self.a_body(1, False, 1)
            a("s_mov_b32 s62, 3\ns_cmp_eq_u32 s13, 0\ns_cbranch_scc1 L_aswitch")
            a.label("L_alast0")
            self.a_body(0, False, 2)
            a("s_nop 3\ns_branch L_adone2")
            a.label("L_adrain0")
            self.a_body(0, False, 1)
            self.a_body(1, False, 2)
            a("s_mov_b32 s62, 0")
        else: a("s_branch L_aloop")
        def blk_ext():
            for s in range(R):
                if not ext[s]: continue
                a.label(f"L_aext{s}")
                for t in ext[s]: self.a_body(t, False)
                if s == last_ext: a("s_mov_b32 s56, 0")
                a(f"s_branch L_aback{s}")
            a.c("slow path: flags not there yet")
            a.label("L_aflag")
            a(f"s_sleep 2\nglobal_load_dword v57, v58, s[{P_DBG}:{P_DBG+1}] sc1\ns_waitcnt vmcnt(0)")
            a("v_cmp_gt_u32 vcc, 2, v57\ns_cbranch_vccz L_aflag_ok\ns_sub_u32 s101, s101, 1\ns_cbranch_scc0 L_aflag\ns_mov_b32 s101, 0\ns_branch L_aflag_ok")
        def blk_done():
            a.label("L_adone")
            a("s_cmp_eq_u32 s13, 0\ns_cbranch_scc1 L_aswitch")
            a.label("L_adone2")
            self.stamp(4)
            self.a_pack(54, 16)
            a("v_cmp_gt_u32 vcc, 48, v1\nv_cndmask_b32 v16, v16, v50, vcc\nv_cndmask_b32 v17, v17, v51, vcc")
            a("v_permlane16_swap_b32 v52, v54\nv_permlane16_swap_b32 v53, v55\nv_cmp_gt_u32 vcc, 32, v1")
            for r in range(4): a(f"v_cndmask_b32 v{52+r}, v{16+(r&1)}, v{52+r}, vcc")
            for r in range(4): a(f"v_min_u32 v{52+r}, -2, v{52+r}")
            a(f"s_mov_b32 s54, {WS_APART}\nbuffer_store_dwordx4 v[52:55], v3, {self.S(SRD_WS)}, s54 offen sc1")
            if self.stamps: a(f"s_sub_u32 s76, s58, s59\ns_lshr_b32 s76, s76, {15 if il else 12}\ns_mul_i32 s76, s76, 10\ns_add_u32 s76, s76, s64\ns_mov_b32 s77, s65")
            self.stamp(5)
            if self.EPI == 2: return self.dyn_epilogue()
            if self.EPI: return self.epilogue()
            self.write_stamps()
            a("s_endpgm")
        if self.o.get('dn', 1): blk_done(); blk_ext()
        else: blk_ext(); blk_done()
        a.label("L_roleA_end")
        a.vm_count = True

    def signal(self, off):
        a = self.a
        lab = a.newlabel('nosig')
        a(f"s_cmp_lg_u32 {sW}, 0\ns_cbranch_scc1 {lab}")
        if off is None: a(f"s_lshl_b32 s54, {sH}, 2\nv_mov_b32 v5, s54")
        else: a(f"v_mov_b32 v5, {off}")
        a("v_mov_b32 v6, 1\ns_mov_b64 exec, 1")
        a.vm_count = False
        a(f"global_atomic_add v5, v6, s[{P_DBG}:{P_DBG+1}]")
        a.vm_count = True
        a("s_mov_b64 exec, -1")
        a.label(lab)

    def wait_counter(self, voff_setup, target):
        a = self.a
        lab, done = a.newlabel('poll'), a.newlabel('polled')
        a(f"s_cmp_lg_u32 {sW}, 0\ns_cbranch_scc1 {done}")
        a(voff_setup)
        a.vm_count = False
        a.label(lab)
        a(f"global_load_dword v6, v5, s[{P_DBG}:{P_DBG+1}] sc1")
        a("s_waitcnt vmcnt(0)")
        a(f"v_cmp_le_u32 vcc, {target}, v6")
        a(f"s_cbranch_vccnz {done}\ns_sleep 2\ns_sub_u32 s101, s101, 1\ns_cbranch_scc0 {lab}\ns_mov_b32 s101, 0")
        a.label(done)
        a.vm_count = True
        a("s_barrier")

    def flags_issue(self, va, vd):
        self.a(f"v_and_b32 v{va}, 31, v1\nv_lshlrev_b32 v{va}, 2, v{va}\nglobal_load_dword v{vd}, v{va}, s[{P_DBG}:{P_DBG+1}] sc1")
    def flags_check(self, va, vd):
        a = self.a
        lab, done = a.newlabel('flags'), a.newlabel('flagsok')
        a.label(lab)
        a(f"v_cmp_gt_u32 vcc, 2, v{vd}\ns_cbranch_vccz {done}\ns_sleep 2")
        a(f"global_load_dword v{vd}, v{va}, s[{P_DBG}:{P_DBG+1}] sc1\ns_waitcnt vmcnt(0)")
        a(f"s_sub_u32 s101, s101, 1\ns_cbranch_scc0 {lab}\ns_mov_b32 s101, 0")
        a.label(done)
    def masked_poll(self, loads, tmp, depth=1, lazy=0, pre=False):
        a = self.a
        lab, ok = a.newlabel('mpoll'), a.newlabel('mpollok')
        n = len(loads)
        if pre: a(f"s_branch {lab}_c")
        else:
            for j in range(n): a(f"s_mov_b64 s[{4+2*j}:{5+2*j}], -1")
        a.label(lab)
        for j, (t, r) in enumerate(loads): a(f"s_mov_b64 exec, s[{4+2*j}:{5+2*j}]\n" + t)
        a(f"s_mov_b64 exec, -1\ns_waitcnt vmcnt({n*(depth-1)})")
        if pre: a.label(lab + "_c")
        for j, (t, r) in enumerate(loads): a(f"v_max3_u32 v{tmp+j}, v{r}, v{r+1}, v{r+2}")
        for j, (t, r) in enumerate(loads): a(f"v_max_u32 v{tmp+j}, v{tmp+j}, v{r+3}")
        for j, (t, r) in enumerate(loads): a(f"v_cmp_eq_u32 s[{4+2*j}:{5+2*j}], -1, v{tmp+j}")
        a("s_or_b64 vcc, s[4:5], s[6:7]")
        for j in range(2, n): a(f"s_or_b64 vcc, vcc, s[{4+2*j}:{5+2*j}]")
        a(f"s_cbranch_scc0 {ok}")
        if lazy:
            a("s_and_b64 vcc, s[4:5], s[6:7]")
            for j in range(2, n): a(f"s_and_b64 vcc, vcc, s[{4+2*j}:{5+2*j}]")
            a(f"s_cmp_eq_u64 vcc, -1\ns_cbranch_scc0 {lab}_b\ns_sleep {lazy}\n{lab}_b:")
        a(f"s_sub_u32 s101, s101, 1\ns_cbranch_scc0 {lab}\ns_mov_b32 s101, 0")
        a.label(ok)
    def umax(self, dst, regs, t2):
        a = self.a
        h = len(regs) // 2
        chains = [(dst, list(regs[:h])), (t2, list(regs[h:]))]
        for d, r in chains:
            a(f"v_max3_u32 v{d}, v{r[0]}, v{r[1]}, v{r[2]}"); del r[:3]
        while any(len(r) >= 2 for _, r in chains):
            for d, r in chains:
                if len(r) >= 2: a(f"v_max3_u32 v{d}, v{d}, v{r[0]}, v{r[1]}"); del r[:2]
        left = chains[0][1] + chains[1][1]
        if len(left) == 2: a(f"v_max3_u32 v{dst}, v{dst}, v{left[0]}, v{left[1]}"); left = []
        if left: a(f"v_max3_u32 v{dst}, v{dst}, v{t2}, v{left[0]}")
        else: a(f"v_max_u32 v{dst}, v{dst}, v{t2}")
    def qabs_store(self, r0):
        a = self.a
        a.c("q_abs store: lane (n,G): batch n>>2, c = 128w + 32(n&3) + 8G..+8")
        a("v_lshrrev_b32 v5, 2, v3\nv_lshlrev_b32 v5, 15, v5\nv_lshl_add_u32 v5, v4, 4, v5\nv_and_b32 v6, 3, v3\nv_lshl_add_u32 v5, v6, 6, v5")
        a(f"s_lshl_b32 s54, {sH}, 10\ns_lshl_b32 s55, {sW}, 8\ns_add_u32 s54, s54, s55\ns_add_u32 s54, s54, {WS_QABS}")
        a(f"buffer_store_dwordx4 v[{r0}:{r0+3}], v5, {self.S(SRD_WS)}, s54 offen sc1")
    def part_addr(self, n):
        a = self.a
        a(f"s_lshl_b32 s58, {sH}, 2\ns_add_u32 s58, s58, {sW}\ns_lshl_b32 s58, s58, 13\ns_add_u32 s58, s58, {WS_APART}\ns_add_u32 s59, s58, 4096")
        a(f"v_min_u32 v6, {n//4-1}, v3\nv_lshl_add_u32 v6, v6, 2, v4\nv_lshlrev_b32 v6, 4, v6")
    def part_io(self, k): return f"v2, {self.S(SRD_WS)}, s{58 + k // 4} offen offset:{1024*(k&3)} sc1"
    def combine(self, n):
        a = self.a
        D = "row_mask:0xf bank_mask:0xf"
        K = n // 4
        self.part_addr(n)
        light, heavy = a.newlabel('light'), a.newlabel('heavy')
        a.label(light)
        a(f"buffer_load_dword v236, v6, {self.S(SRD_WS)}, s59 offen offset:2048 sc1")
        a(f"s_waitcnt vmcnt(0)\nv_cmp_ne_u32 vcc, -1, v236\ns_bcnt1_i32_b64 s54, vcc\ns_cmp_ge_u32 s54, {self.o.get('lt', 24)}")
        a(f"s_cbranch_scc1 {heavy}\ns_sleep 2\ns_sub_u32 s101, s101, 1\ns_cbranch_scc0 {light}\ns_mov_b32 s101, 0")
        a.label(heavy)
        loads = [(f"buffer_load_dwordx4 v[232:235], v6, {self.S(SRD_WS)}, s59 offen offset:2048 sc1", 232)]
        loads += [(f"buffer_load_dwordx4 v[{16+4*k}:{19+4*k}], " + self.part_io(k), 16 + 4 * k) for k in range(K)]
        self.masked_poll(loads, 236)
        self.stamp(7)
        def allred(op, r):
            o = [f"{op}_dpp v{r}, v{r}, v{r} row_ror:{sh} {D}" for sh in (1, 2, 4, 8)]
            for p in (16, 32): o += [f"v_mov_b32 v236, v{r}", f"v_permlane{p}_swap_b32 v{r}, v236", f"{op} v{r}, v{r}, v236"]
            return o
        co = [f"v_cmp_gt_u32 vcc, {K}, v3", "v_cndmask_b32 v233, 0, v233, vcc"]
        co += allred("v_max_f32", 234)
        co += ["v_sub_f32 v232, v232, v234", "v_mul_f32 v232, s97, v232", "v_exp_f32 v232, v232", "v_mul_f32 v233, v233, v232"]
        un = []
        for k in range(K):
            for q in range(4): un += [f"v_lshlrev_b32 v{40+4*k+q}, 16, v{16+4*k+q}", f"v_and_b32 v{16+4*k+q}, s98, v{16+4*k+q}"]
        for t in mix(un, co, 3 if K > 2 else 1): a(t)
        fm = []
        for k in range(K):
            op = "v_mul_f32_dpp" if k == 0 else "v_fmac_f32_dpp"
            for q in range(4):
                fm += [f"{op} v{224+2*q}, v232, v{40+4*k+q} row_newbcast:{k} {D}", f"{op} v{225+2*q}, v232, v{16+4*k+q} row_newbcast:{k} {D}"]
        for t in mix(fm, allred("v_add_f32", 233) + ["v_rcp_f32 v233, v233"], 3 if K > 2 else 1): a(t)
        for e in range(4): a(f"v_permlane32_swap_b32 v{224+e}, v{228+e}")
        for e in range(4): a(f"v_add_f32 v{224+e}, v{224+e}, v{228+e}")
        for e in range(2): a(f"v_permlane16_swap_b32 v{224+e}, v{226+e}")
        for e in range(2): a(f"v_add_f32 v{224+e}, v{224+e}, v{226+e}")
        for e in range(2): a(f"v_mul_f32 v{224+e}, v{224+e}, v233")

    def pv_masks(self):
        a = self.a
        a("v_and_b32 v5, 1, v3\nv_cmp_eq_u32 vcc, 1, v5\nv_mov_b32 v5, 0xffff\nv_mov_b32 v6, 0xffff0000\nv_cndmask_b32 v5, v5, v6, vcc")
        a("v_lshrrev_b32 v6, 1, v3")
        for q in range(4):
            a(f"v_cmp_eq_u32 vcc, {q}, v6\nv_cndmask_b32 v{8+q}, 0, v5, vcc")
    def combine2(self, n, epi=False):
        a = self.a
        D = "row_mask:0xf bank_mask:0xf"
        K = n // 4
        P = 2 if K == 2 else 8
        light, heavy = a.newlabel('light'), a.newlabel('heavy')
        ml = f"v30, {self.S(SRD_WS)}, s58 offen sc1" if epi else f"v6, {self.S(SRD_WS)}, s59 offen offset:2048 sc1"
        loads = [(f"buffer_load_dwordx4 v[40:43], " + ml, 40)]
        db = 192 if epi else 16
        loads += [(f"buffer_load_dwordx4 v[{db+4*k}:{db+3+4*k}], " + self.part_io(k), db + 4 * k) for k in range(K)]
        if epi:
            for t, r in loads: a(t)
            self.epi_rest()
            a(f"s_lshl_b32 s54, {sW}, 9\nv_lshl_add_u32 v5, v3, 4, s54\nv_and_b32 v6, 1, v4\nv_lshl_add_u32 v5, v6, 3, v5\nv_lshrrev_b32 v6, 1, v4\nv_lshl_add_u32 v5, v6, 8, v5")
            a("v_lshrrev_b32 v7, 2, v3\nv_lshlrev_b32 v7, 9, v7\nv_lshl_add_u32 v7, v4, 4, v7\nv_and_b32 v6, 1, v1\nv_lshl_add_u32 v7, v6, 6, v7")
            a(f"v_and_b32 v6, {P-1}, v3\nv_cmp_gt_u32 s[20:21], {K}, v6")
            self.epi_tr(0, K + 1)
            self.stamp(13)
            a("s_waitcnt vmcnt(0)")
        else: a(f"v_and_b32 v6, {P-1}, v3\nv_cmp_gt_u32 s[20:21], {K}, v6\nv_min_u32 v6, {K-1}, v6\nv_lshl_add_u32 v6, v6, 2, v4\nv_lshlrev_b32 v6, 4, v6")
        if not epi:
            a.label(light)
            a(f"buffer_load_dword v236, " + ml)
            a(f"s_waitcnt vmcnt(0)\nv_cmp_ne_u32 vcc, -1, v236\ns_bcnt1_i32_b64 s54, vcc\ns_cmp_ge_u32 s54, {self.o.get('lt', 24)}")
            a(f"s_cbranch_scc1 {heavy}\ns_sleep 2\ns_sub_u32 s101, s101, 1\ns_cbranch_scc0 {light}\ns_mov_b32 s101, 0")
            a.label(heavy)
        self.masked_poll(loads, 236, self.o.get('cd', 2), pre=epi)
        self.stamp(14 if epi else 7)
        def allred(op, r, src, t):
            o = []
            for sh in ((1,) if P == 2 else (1, 2, 4)):
                o.append(f"{op}_dpp v{r}, v{src}, v{src} row_ror:{sh} {D}"); src = r
            for p in (16, 32): o += [f"v_mov_b32 v{t}, v{r}", f"v_permlane{p}_swap_b32 v{r}, v{t}", f"{op} v{r}, v{r}, v{t}"]
            return o
        for t in mix(allred("v_max_f32", 44, 40, 45), ["v_cndmask_b32 v47, 0, v41, s[20:21]"], 1, 1): a(t)
        a("v_sub_f32 v45, v40, v44\nv_mul_f32 v45, s97, v45\nv_exp_f32 v45, v45\nv_cvt_pk_bf16_f32 v46, v45, v45\nv_and_b32 v45, s98, v46\nv_mul_f32 v47, v47, v45")
        fm = []
        for k in range(K):
            tb = 232 + 4 * k
            fm += [f"v_and_b32_dpp v{tb+q}, v46, v{8+q} row_newbcast:{k} {D}" for q in range(4)]
            if k: fm.append(f"v_mfma_f32_16x16x32_bf16 v[228:231], v[{tb-4}:{tb-1}], v[{db-4+4*k}:{db-1+4*k}], " + ("0" if k == 1 else "v[228:231]"))
        red = allred("v_add_f32", 47, 47, 45) + ["v_rcp_f32 v47, v47"]
        last = f"v_mfma_f32_16x16x32_bf16 v[228:231], v[{228+4*K}:{231+4*K}], v[{db-4+4*K}:{db-1+4*K}], v[228:231]"
        if K > 2:
            for t in mix(fm, red[:-3], 4, 2) + red[-3:-1] + [last] + red[-1:]: a(t)
        else:
            for t in mix(fm, red[:3], 3, 2) + [red[3], last] + red[4:]: a(t)
        for e in range(4): a(f"v_mul_f32 v{228+e}, v{228+e}, v47")
        a("v_cvt_pk_bf16_f32 v224, v228, v229\nv_cvt_pk_bf16_f32 v225, v230, v231")
    def oproj2(self, va, vx, so, xa=None):
        a = self.a
        mf = lambda d, kk, b, f='v': f"v_mfma_f32_16x16x32_bf16 v[{d}:{d+3}], v[{48+4*kk}:{51+4*kk}], {f}[{b}:{b+3}], " + ("0" if kk == 0 else f"v[{d}:{d+3}]")
        for kk in range(4):
            a(f"s_waitcnt lgkmcnt({3-kk})")
            for j in range(4): a(mf(224 + 4 * j, kk, 64 + 32 * kk + 4 * j))
            for j in range(2): a(mf(8 + 4 * j, kk, 192 + 8 * kk + 4 * j) if xa is None else mf(8 + 4 * j, kk, xa + 8 * kk + 4 * j, 'a'))
        g2 = [mf(224 + 4 * j, kk, 64 + 32 * kk + 4 * j) for kk in range(4) for j in range(4, 8)]
        side = [f"v_min_u32 v{224+j}, -2, v{224+4*j}" for j in range(4)] + [f"buffer_store_dwordx4 v[224:227], v{va}, {self.S(SRD_WS)}, s{so} offen sc1"]
        side += [f"v_min_u32 v{8+j}, -2, v{8+4*j}" for j in range(2)] + [f"buffer_store_dwordx2 v[8:9], v{vx}, {self.S(SRD_WS)}, s{so+2} offen sc1"]
        for t in mix(g2, side, 1, 4): a(t)
        for j in range(4): a(f"v_min_u32 v{240+j}, -2, v{240+4*j}")
        a(f"buffer_store_dwordx4 v[240:243], v{va}, {self.S(SRD_WS)}, s{so+1} offen sc1")
    def final_reduce2(self, part, lazy):
        a = self.a
        skip = a.newlabel('nored')
        a(f"s_lshl_b32 s54, {sW}, 5\ns_add_u32 s54, s54, s53")
        if part == 0 and not self.EPI: a("s_sub_u32 s54, 127, s54")
        a(f"s_cmp_ge_u32 s54, 72\ns_cbranch_scc1 {skip}")
        if part == 0: a("s_waitcnt vmcnt(0)")
        for r in range(48, 64): a(f"v_mov_b32 v{r}, -1")
        a(f"s_lshl_b32 s55, s54, 12\ns_add_u32 s55, s55, {WS_Y + part * WS_YPART}")
        if self.EPI:
            a.c("output address: tau = 18 b + k -> columns 32k..; lane (r, p) ends up with element r of piece p")
            a(f"s_mul_hi_u32 s56, s54, {M18}\ns_add_u32 s56, s56, {part}\ns_mul_i32 s56, s56, 1152\ns_lshl_b32 s57, s54, 6\ns_add_u32 s56, s56, s57")
            a("v_lshlrev_b32 v5, 3, v3\nv_lshl_add_u32 v5, v4, 1, v5\nv_mov_b32 v6, 0x4000\nv_cmp_gt_u32 vcc, 8, v3\nv_cndmask_b32 v5, v6, v5, vcc")
        else:
            a.c("output address: b = tau/18, k = tau%18; lane (r, p) ends up with element r of piece p")
            a(f"s_mul_hi_u32 s56, s54, {M18}\ns_mul_i32 s57, s56, 18\ns_sub_u32 s57, s54, s57")
            a(f"s_mul_i32 s56, s56, 2304\ns_add_u32 s56, s56, {1152*part}")
            a("s_lshr_b32 s58, s57, 1\ns_lshl_b32 s58, s58, 7\ns_and_b32 s59, s57, 1")
            a("s_cmp_lt_u32 s57, 16\ns_cselect_b32 s60, 3, 6\ns_cselect_b32 s61, 4, 3")
            a("s_lshl_b32 s59, s59, s60\ns_add_u32 s56, s56, s58\ns_add_u32 s56, s56, s59")
            a("v_lshlrev_b32 v5, s61, v3\nv_lshl_add_u32 v5, v4, 1, v5\nv_mov_b32 v6, 0x4000\nv_cmp_gt_u32 vcc, 8, v3\nv_cndmask_b32 v5, v6, v5, vcc")
        self.masked_poll([(f"buffer_load_dwordx4 v[{48+4*i}:{51+4*i}], v2, {self.S(SRD_WS)}, s55 offen offset:{1024*i} sc1", 48 + 4 * i) for i in range(4)], 32, self.o.get('fr', 2), lazy)
        for r in (0, 2, 1, 3): a(f"v_add_f32 v{16+r}, v{48+r}, v{52+r}\nv_add_f32 v{24+r}, v{56+r}, v{60+r}")
        for r in (0, 2, 1, 3): a(f"v_add_f32 v{16+r}, v{16+r}, v{24+r}")
        a("v_permlane32_swap_b32 v16, v18\nv_permlane32_swap_b32 v17, v19\nv_add_f32 v16, v16, v18\nv_add_f32 v17, v17, v19")
        a("v_permlane16_swap_b32 v16, v17\nv_add_f32 v16, v16, v17\nv_add_f32_dpp v16, v16, v16 row_ror:8 row_mask:0xf bank_mask:0xf")
        a(f"v_cvt_pk_bf16_f32 v16, v16, v16\nbuffer_store_short v16, v5, {self.S(SRD_D)}, s56 offen")
        a.label(skip)

    def y_addr(self):
        a = self.a
        sk = self.o.get('ysk', 0)
        a(f"v_mul_u32_u24 v7, {18*4096}, v4")
        a("v_lshrrev_b32 v5, 3, v3\nv_lshl_add_u32 v6, v5, 13, v7")
        if sk:
            a(f"s_lshl_b32 s54, {sW}, 1\ns_add_u32 s54, s54, {sH}\nv_mad_u32_u24 v5, v4, 9, v5\nv_add_u32 v5, s54, v5\nv_and_b32 v5, 31, v5\nv_lshl_add_u32 v6, v5, 7, v6")
        a("v_and_b32 v5, 7, v3\nv_lshl_add_u32 v6, v5, 4, v6")
        a(f"v_lshl_add_u32 v7, v3, 3, v7\nv_add_u32 v7, {16*4096}, v7")
        if sk:
            a(f"s_add_u32 s54, {sH}, 8\nv_mad_u32_u24 v5, v4, 9, s54\nv_and_b32 v5, 31, v5\nv_lshl_add_u32 v7, v5, 7, v7")
    def y_soff(self, part):
        a = self.a
        if self.o.get('ysk', 0): a(f"s_mov_b32 s56, {WS_Y + part * WS_YPART}")
        else: a(f"s_lshl_b32 s56, {sH}, 7\ns_add_u32 s56, s56, {WS_Y + part * WS_YPART}")
        a(f"s_lshl_b32 s54, {sW}, 14\ns_add_u32 s54, s54, s56\ns_add_u32 s55, s54, 4096")
        a(f"s_and_b32 s57, {sW}, 1\ns_lshl_b32 s57, s57, 12\ns_add_u32 s56, s56, s57")
    def y_store(self, r0, r1, rx):
        a = self.a
        a(f"buffer_store_dwordx4 v[{r0}:{r0+3}], v6, {self.S(SRD_WS)}, s54 offen sc1")
        a(f"buffer_store_dwordx4 v[{r1}:{r1+3}], v6, {self.S(SRD_WS)}, s55 offen sc1")
        a(f"buffer_store_dwordx2 v[{rx}:{rx+1}], v7, {self.S(SRD_WS)}, s56 offen sc1")

    def oproj_list(self, srd, f='v', va=80):
        main, extra = [], []
        for rb in range(4):
            for e in range(8):
                r = 96 + 32 * rb + 4 * e
                adv = {3: 4608, 7: 36864 - 4608}.get(e)
                main.append(f"buffer_load_dwordx4 {f}[{r}:{r+3}], v{va}, {self.S(srd)}, s99 offen offset:{1152*(e&3)} nt" + (f"\ns_add_u32 s99, s99, {adv}" if adv else ""))
                extra.append(f"buffer_load_dword {f}{224+8*rb+e}, v{va+1}, {self.S(srd)}, s100 offen offset:{1152*(e&3)} nt" + (f"\ns_add_u32 s100, s100, {adv}" if adv else ""))
        return main, extra
    def oproj_addr(self, va=80):
        a = self.a
        a(f"v_mul_u32_u24 v{va+1}, 9216, v4\nv_lshl_add_u32 v{va}, v3, 4, v{va+1}\nv_lshl_add_u32 v{va+1}, v3, 2, v{va+1}")
        a(f"s_mul_i32 s100, {sH}, 147456\ns_lshl_b32 s54, {sW}, 8\ns_add_u32 s99, s100, s54")
        a(f"s_and_b32 s54, {sW}, 1\ns_lshl_b32 s54, s54, 6\ns_add_u32 s100, s100, s54\ns_add_u32 s100, s100, 1024")
    def issue_capped(self, items, cap=40):
        a = self.a
        for t in items:
            if a.vm - a.vm_done + a.vm_slack >= 62: a(f"s_waitcnt vmcnt({cap})")
            a(t)
    def oproj_transpose(self):
        a = self.a
        a("s_mov_b32 s54, 0x05040100\ns_mov_b32 s55, 0x07060302")
        for rb in range(4):
            for j in range(8):
                for q in range(4):
                    lo, hi = 96 + 32 * rb + 4 * (2 * q) + (j >> 1), 96 + 32 * rb + 4 * (2 * q + 1) + (j >> 1)
                    a(f"v_perm_b32 v{64+32*rb+4*j+q}, v{hi}, v{lo}, s{54+(j&1)}")
        for rb in range(4):
            for j in range(2):
                for q in range(4):
                    a(f"v_perm_b32 v{192+8*rb+4*j+q}, v{224+8*rb+2*q+1}, v{224+8*rb+2*q}, s{54+j}")
    def tr_main(self, rb):
        for j in range(8):
            for q in range(4):
                lo, hi = 96 + 32 * rb + 4 * (2 * q) + (j >> 1), 96 + 32 * rb + 4 * (2 * q + 1) + (j >> 1)
                self.a(f"v_perm_b32 v{64+32*rb+4*j+q}, v{hi}, v{lo}, s{24+(j&1)}")
    def tr_extra(self, dst, tmp):
        a = self.a
        for rb in range(4):
            for j in range(2):
                for q in range(4):
                    a(f"v_perm_b32 v{tmp+8*rb+4*j+q}, v{224+8*rb+2*q+1}, v{224+8*rb+2*q}, s{24+j}")
        for r in range(32): a(f"v_accvgpr_write_b32 a{dst+r}, v{tmp+r}")
    def trigger(self, thr, va, vd):
        a = self.a
        lab, ok = a.newlabel('trig'), a.newlabel('trigok')
        a(f"s_lshr_b32 s54, {sH}, 2\ns_sub_u32 s54, {sH}, s54\ns_and_b32 s54, s54, 3\ns_lshl_b32 s55, {sH}, 2\ns_add_u32 s54, s54, s55")
        if thr < 64:
            a(f"s_lshl_b32 s54, s54, 13\ns_add_u32 s54, s54, {WS_APART + 6144}\ns_mov_b64 exec, {(1 << NSD) - 1}")
            a.label(lab)
            a(f"buffer_load_dword v{vd}, v2, {self.S(SRD_WS)}, s54 offen sc1\ns_waitcnt vmcnt(0)")
            a(f"v_cmp_ne_u32 vcc, -1, v{vd}\ns_bcnt1_i32_b64 s55, vcc\ns_cmp_ge_u32 s55, {thr}")
        else:
            a(f"s_lshl_b32 s54, s54, 7\ns_add_u32 s54, s54, {WS_CTR}\ns_mov_b64 exec, 1")
            a.label(lab)
            a(f"buffer_load_dword v{vd}, v2, {self.S(SRD_WS)}, s54 offen sc1\ns_waitcnt vmcnt(0)")
            a(f"v_readfirstlane_b32 s55, v{vd}\ns_cmp_ge_u32 s55, {thr}")
        a(f"s_cbranch_scc1 {ok}\ns_sleep {self.o.get('tsl', 1)}\ns_sub_u32 s101, s101, 1\ns_cbranch_scc0 {lab}\ns_mov_b32 s101, 0")
        a.label(ok)
        a("s_mov_b64 exec, -1")
    def late_loads(self, items, n):
        a = self.a
        mk = []
        for k, t in enumerate(items):
            a(t)
            if k % 8 == 7: mk.append(a.mark())
        for k in range(n):
            a.wait_for(mk[k]); self.tr_main(4 - n + k)
    def oproj_compute_publish(self, part):
        a = self.a
        for kk in range(4):
            for j in range(8):
                c = "0" if kk == 0 else f"v[{224+4*j}:{227+4*j}]"
                a(f"v_mfma_f32_16x16x32_bf16 v[{224+4*j}:{227+4*j}], v[{48+4*kk}:{51+4*kk}], v[{64+32*kk+4*j}:{67+32*kk+4*j}], {c}")
            for j in range(2):
                c = "0" if kk == 0 else f"v[{40+4*j}:{43+4*j}]"
                a(f"v_mfma_f32_16x16x32_bf16 v[{40+4*j}:{43+4*j}], v[{48+4*kk}:{51+4*kk}], v[{192+8*kk+4*j}:{195+8*kk+4*j}], {c}")
        self.y_addr(); self.y_soff(part)
        if self.o.get('fr', 1) > 1 and not self.o.get('t2', 1):
            for r in range(48, 64): a(f"v_mov_b32 v{r}, -1")
        for j in range(8): a(f"v_min_u32 v{16+j}, -2, v{224+4*j}")
        for j in range(2): a(f"v_min_u32 v{24+j}, -2, v{40+4*j}")
        self.y_store(16, 20, 24)

    def final_reduce(self, part):
        a = self.a
        skip = a.newlabel('nored')
        D = "row_mask:0xf bank_mask:0xf"
        a(f"s_lshl_b32 s54, {sW}, 5\ns_add_u32 s54, s54, s53\ns_cmp_ge_u32 s54, 72\ns_cbranch_scc1 {skip}")
        a(f"s_lshl_b32 s55, s54, 12\ns_add_u32 s55, s55, {WS_Y + part * WS_YPART}")
        a.c("output address: b = tau/18, k = tau%18")
        a(f"s_mul_hi_u32 s56, s54, {M18}\ns_mul_i32 s57, s56, 18\ns_sub_u32 s57, s54, s57")
        a(f"s_mul_i32 s56, s56, 2304\ns_add_u32 s56, s56, {1152*part}")
        a("s_lshr_b32 s58, s57, 1\ns_lshl_b32 s58, s58, 7\ns_and_b32 s59, s57, 1")
        a("s_cmp_lt_u32 s57, 16\ns_cselect_b32 s60, 3, 6\ns_cselect_b32 s61, 4, 3")
        a("s_lshl_b32 s59, s59, s60\ns_add_u32 s56, s56, s58\ns_add_u32 s56, s56, s59")
        a("v_lshlrev_b32 v5, s61, v1")
        if part: self.srd(SRD_D, P_OUT, 9216)
        self.masked_poll([(f"buffer_load_dwordx4 v[{48+4*i}:{51+4*i}], v2, {self.S(SRD_WS)}, s55 offen offset:{1024*i} sc1", 48 + 4 * i) for i in range(4)], 32, self.o.get('fr', 1))
        for r in range(4): a(f"v_add_f32 v{16+r}, v{48+r}, v{52+r}\nv_add_f32 v{24+r}, v{56+r}, v{60+r}")
        for r in range(4): a(f"v_add_f32 v{16+r}, v{16+r}, v{24+r}")
        for r in range(4): a(f"v_add_f32_dpp v{16+r}, v{16+r}, v{16+r} row_ror:8 {D}")
        for r in range(4): a(f"v_mov_b32 v{20+r}, v{16+r}")
        for r in range(4): a(f"v_permlane16_swap_b32 v{16+r}, v{20+r}")
        for r in range(4): a(f"v_add_f32 v{16+r}, v{16+r}, v{20+r}")
        for r in range(4): a(f"v_mov_b32 v{20+r}, v{16+r}")
        for r in range(4): a(f"v_permlane32_swap_b32 v{16+r}, v{20+r}")
        for r in range(4): a(f"v_add_f32 v{16+r}, v{16+r}, v{20+r}")
        a("v_cvt_pk_bf16_f32 v16, v16, v17\nv_cvt_pk_bf16_f32 v17, v18, v19")
        a("s_mov_b64 exec, 0xff")
        a(f"buffer_store_dwordx2 v[16:17], v5, {self.S(SRD_D)}, s56 offen")
        a("s_mov_b64 exec, -1")
        a.label(skip)

    def ckv_dma(self):
        a = self.a
        for i in range(8):
            a(f"s_add_u32 m0, s59, {1024*i}\ns_add_u32 s54, s58, {16384*(i>>2)}")
            a(f"buffer_load_dwordx4 v{20+(i&3)}, {self.S(SRD_A)}, s54 offen nt lds")
        a("s_add_u32 s58, s58, 32768\ns_add_u32 s59, s59, 8192")
    def ckv_regs(self, buf):
        f, base = buf
        return [f"buffer_load_dwordx4 {f}[{base+4*i}:{base+4*i+3}], v{20+(i&3)}, {self.S(SRD_A)}, s58 offen nt" +
                ("\ns_add_u32 s58, s58, 16384" if i & 3 == 3 else "") for i in range(8)]

    def qa_clear(self, half):
        a = self.a
        a(f"v_mov_b32 v7, {OOB_WS}\nv_cmp_gt_u32 vcc, 32, v1\nv_cndmask_b32 v123, v7, v2, vcc")
        a(f"s_lshl_b32 s98, {sH}, 12\ns_lshl_b32 s54, {sW}, 9\ns_add_u32 s98, s98, s54\ns_add_u32 s98, s98, {WS_QA + 2048*half}")
        a(f"buffer_store_dwordx4 v[20:23], v123, {self.S(SRD_WS)}, s98 offen sc1")
    def qa_publish(self, acc):
        a = self.a
        base = LDS_X + 8192
        self.proj_store_partials(acc, 5, base)
        a(f"s_lshl_b32 s54, {sW}, 9\ns_add_u32 s54, s54, {base}\nv_add_u32 v5, s54, v2")
        for w in range(4): a(f"ds_read_b128 v[{96+4*w}:{99+4*w}], v5 offset:{2048*w}")
        a("s_waitcnt lgkmcnt(0)")
        for r in range(4): a(f"v_add_f32 v{96+r}, v{96+r}, v{100+r}\nv_add_f32 v{104+r}, v{104+r}, v{108+r}")
        for r in range(4): a(f"v_add_f32 v{96+r}, v{96+r}, v{104+r}")
        for r in range(4): a(f"v_min_u32 v{124+r}, -2, v{96+r}")
        a(f"buffer_store_dwordx4 v[124:127], v123, {self.S(SRD_WS)}, s98 offen sc1")

    def ltest(self):
        a = self.a
        m = self.o['ltest']
        a.vm_reset()
        a("s_waitcnt lgkmcnt(0)")
        self.srd(SRD_WS, P_WS, 0x20000000); self.srd(SRD_A, P_CKV, 0x1000000)
        a(f"s_lshl_b32 s55, {sH}, 2\ns_add_u32 s55, s55, {sW}\ns_lshl_b32 s55, s55, 7\ns_add_u32 s55, s55, {WS_CTR}")
        a(f"s_mov_b64 exec, 1\nv_mov_b32 v5, 0\nbuffer_store_dword v5, v5, {self.S(SRD_WS)}, s55 offen sc1\ns_mov_b64 exec, -1")
        if m == 1:
            a(f"s_lshl_b32 s54, s2, 18\ns_lshl_b32 s55, {sW}, 16\ns_add_u32 s54, s54, s55\nv_mov_b32 v5, v2"); st = 1024
        elif m == 2:
            a(f"s_lshr_b32 s54, s2, 5\ns_lshl_b32 s54, s54, 23\ns_lshl_b32 s55, {sW}, 21\ns_add_u32 s54, s54, s55\ns_lshl_b32 s55, {sH}, 8\ns_add_u32 s54, s54, s55")
            a("v_lshlrev_b32 v5, 19, v4\nv_lshl_add_u32 v5, v3, 4, v5"); st = 8192
        elif m == 3:
            a(f"s_lshl_b32 s54, s2, 18\ns_lshl_b32 s55, {sW}, 8\ns_add_u32 s54, s54, s55")
            a("v_lshlrev_b32 v5, 10, v4\nv_lshl_add_u32 v5, v3, 4, v5"); st = 4096
        elif m == 4:
            a(f"s_lshr_b32 s54, s2, 5\ns_lshl_b32 s54, s54, 23\ns_lshl_b32 s55, {sW}, 21\ns_add_u32 s54, s54, s55\ns_lshl_b32 s55, {sH}, 8\ns_add_u32 s54, s54, s55")
            a("v_lshlrev_b32 v5, 13, v4\nv_lshl_add_u32 v5, v3, 4, v5"); st = 32768
        elif m == 5:
            a(f"s_lshr_b32 s54, s2, 3\ns_lshl_b32 s54, s54, 21\ns_lshl_b32 s55, {sW}, 19\ns_add_u32 s54, s54, s55\ns_and_b32 s55, s2, 7\ns_lshl_b32 s55, s55, 10\ns_add_u32 s54, s54, s55")
            a("v_mov_b32 v5, v2"); st = 8192
        if m < 9:
            for k in range(64):
                if k >= 32: a("s_waitcnt vmcnt(31)")
                a(f"buffer_load_dwordx4 a[{4*k}:{4*k+3}], v5, {self.S(SRD_A)}, s54 offen nt\ns_add_u32 s54, s54, {st}")
        a("s_waitcnt vmcnt(0)")
        self.stamp(3); self.stamp(4)
        self.write_stamps()
        a("s_endpgm")

    def role_h(self):
        a = self.a
        a.label("L_roleH")
        if self.o.get('ltest'): self.ltest()
        if self.o.get('noH'): a("s_endpgm")
        a.vm_reset(); a.vm_slack = 1
        a("s_mov_b32 s101, " + str(self.o.get("spin", 100000)))
        if self.stamps: a(f"s_mov_b32 s2, {sH}")
        self.code_prefetch("L_roleH", "L_roleH_end", 1)
        for r in range(4): a(f"v_mov_b32 v{20+r}, -1")
        self.y_addr(); self.y_soff(1)
        a("s_waitcnt lgkmcnt(0)")
        self.srd(SRD_WS, P_WS, 0x20000000)
        self.y_store(20, 20, 20)
        self.qabs_store(20)
        if self.EPI: self.ctx_store(20)
        st = Stream(a, self.o.get('hahead', 28))
        wl = lambda base, t, v, srd, so: f"buffer_load_dwordx4 a[{base+4*t}:{base+3+4*t}], v{v}, {self.S(srd)}, s{so} offen nt\ns_add_u32 s{so}, s{so}, 8192"
        if self.QS == 2:
            self.qa_clear(0)
            mC = a.mark()
            self.srd(SRD_C, P_WQ, 576 * 8192); self.srd(SRD_D, P_AX, 4608)
            self.x_loads(SRD_D, 24, 18, 0)
            self.wq_addr(18, 0)
            iWA = [st.add([wl(0, t, 120, SRD_C, 61) for t in range(9 * g, 9 * g + 9)]) for g in range(2)]
            st.issue(18)
        self.srd(SRD_A, P_BWQ, 576 * 8192); self.srd(SRD_B, P_BX, 4608)
        self.x_loads(SRD_B, 48)
        self.wq_addr()
        iW = [st.add([wl(112, t, 120, SRD_A, 61) for t in range(9 * g, 9 * g + 9)]) for g in range(4)]
        st.issue(iW[0])
        a.c("w_uk rows 128w + 4i + g -> LDS w*32K + row*256, chunk n holds column chunk n ^ (g<<2) ^ ((i>>1)&3)")
        self.srd(SRD_B, P_WUK, 512 * 8192); self.srd(SRD_C, P_WUV, 512 * 8192)
        a("v_lshlrev_b32 v5, 2, v4\nv_xor_b32 v5, v5, v3\nv_lshlrev_b32 v6, 13, v4")
        for m in range(4): a(f"v_xor_b32 v7, {m}, v5\nv_lshl_add_u32 v{88+m}, v7, 4, v6")
        a(f"s_lshl_b32 s62, {sW}, 20\ns_lshl_b32 s54, {sH}, 8\ns_add_u32 s62, s62, s54\ns_mov_b32 s60, s62\ns_lshl_b32 s63, {sW}, 15")
        iU = [st.add([f"s_add_u32 m0, s63, {1024*i}\ns_nop 0\nbuffer_load_dwordx4 v{88+((i>>1)&3)}, {self.S(SRD_B)}, s60 offen nt lds\ns_add_u32 s60, s60, 32768"
                      for i in range(8 * g, 8 * g + 8)]) for g in range(4)]
        a.c("w_uv -> a[4t]: row = 128w + 32g + t")
        a(f"v_lshlrev_b32 v121, 18, v4\nv_lshl_add_u32 v121, v3, 4, v121")
        a.c("P2 read addresses v[92:95]")
        a("v_lshrrev_b32 v5, 2, v3\nv_and_b32 v6, 3, v3\nv_lshl_add_u32 v7, v5, 3, v6\nv_lshlrev_b32 v92, 8, v7")
        a("v_lshl_or_b32 v5, v6, 2, v5\nv_xor_b32 v5, v5, v4\nv_lshl_add_u32 v92, v5, 4, v92\nv_add_u32 v92, s63, v92")
        for kk in range(1, 4): a(f"v_xor_b32 v{92+kk}, {64*kk}, v92")
        self.selectors()
        if self.QS == 2:
            a.wait_for(mC); a("s_barrier")
            self.signal(None)
            for g in range(2):
                st.need(iWA[g])
                self.proj_mfma(list(range(9 * g, 9 * g + 9)), 24, 12, 96, 112, lambda t: f"a[{4*t}:{4*t+3}]", g == 0)
            self.qa_publish(112)
        self.stamp(1)
        if self.o.get('onlyA'):
            self.write_stamps(); a("s_endpgm")
        for g in range(4):
            st.need(iW[g])
            self.proj_mfma(list(range(9 * g, 9 * g + 9)), 48, 20, 96, 112, lambda t: f"a[{112+4*t}:{115+4*t}]", g == 0)
        self.proj_store_partials(112, 5)
        st.issue(iU[3])
        self.operand_from_partials(5, 48, 96)
        self.stamp(2)
        a.c("P2: q_abs tiles -> v[48+4T..]; tile T row i -> c = 128w + 32(T>>1) + 8(i>>2) + 4(T&1) + (i&3)")
        for P in range(4):
            st.need(iU[P])
            for T in (2 * P, 2 * P + 1):
                for kk in range(4):
                    r = 128 + 16 * (T & 3) + 4 * kk
                    a(f"ds_read_b128 v[{r}:{r+3}], v{92+kk} offset:{(32*(T>>1) + 4*(T&1)) * 256}")
            for T in (2 * P, 2 * P + 1):
                for kk in range(4):
                    a(f"s_waitcnt lgkmcnt({7 - 4*(T&1) - kk})")
                    c = "0" if kk == 0 else f"v[{48+4*T}:{51+4*T}]"
                    r = 128 + 16 * (T & 3) + 4 * kk
                    a(f"v_mfma_f32_16x16x32_bf16 v[{48+4*T}:{51+4*T}], v[{r}:{r+3}], v[{96+4*kk}:{99+4*kk}], {c}")
        a(f"s_mov_b32 s96, {f2u(SCALE * LOG2E)}")
        a("v_and_b32 v6, 3, v3")
        for P in range(1, 4):
            a(f"v_cmp_eq_u32 vcc, {P}, v6")
            for r in range(8): a(f"v_cndmask_b32 v{48+r}, v{48+r}, v{48+8*P+r}, vcc")
        for r in range(8): a(f"v_mul_f32 v{48+r}, s96, v{48+r}")
        for r in range(4): a(f"v_cvt_pk_bf16_f32 v{24+r}, v{48+2*r}, v{49+2*r}")
        for r in range(4): a(f"v_min_u32 v{24+r}, -2, v{24+r}")
        self.qabs_store(24)
        self.stamp(3)
        for t in range(32): a(wl(0, t, 121, SRD_C, 62))
        if self.EPI:
            self.flags_issue(16, 17)
            a("s_waitcnt vmcnt(0)")
        else:
            self.srd(SRD_B, P_BWO, 32 * 147456)
            self.oproj_addr()
            main, extra = self.oproj_list(SRD_B)
            self.issue_capped(main)
            self.flags_issue(16, 17)
            self.issue_capped(extra)
            a("s_waitcnt vmcnt(0)")
            self.oproj_transpose()
        a("s_barrier")
        self.stamp(4)
        self.flags_check(16, 17)
        D = "row_mask:0xf bank_mask:0xf"
        a.c("P6: combine the 8 splits of (h, b=w); (m, l) of a split is written after its data has been acknowledged")
        a(f"s_lshl_b32 s58, {sW}, 18\ns_lshl_b32 s54, {sH}, 10\ns_add_u32 s58, s58, s54\ns_add_u32 s58, s58, {WS_BO}")
        a(f"s_lshl_b32 s59, {sW}, 11\ns_lshl_b32 s54, {sH}, 3\ns_add_u32 s59, s59, s54\ns_add_u32 s59, s59, {WS_BML}")
        a("s_mov_b32 s98, 0xffff0000\nv_and_b32 v5, 7, v1\nv_lshlrev_b32 v5, 8, v5")
        light, heavy = a.newlabel('blight'), a.newlabel('bheavy')
        a.label(light)
        a(f"buffer_load_dwordx2 v[232:233], v5, {self.S(SRD_WS)}, s59 offen sc1")
        a(f"s_waitcnt vmcnt(0)\nv_max_u32 v6, v232, v233\nv_cmp_eq_u32 vcc, -1, v6\ns_cbranch_vccz {heavy}\ns_sleep 2\ns_sub_u32 s101, s101, 1\ns_cbranch_scc0 {light}\ns_mov_b32 s101, 0")
        a.label(heavy)
        self.stamp(5)
        for s in range(8):
            a(f"buffer_load_dwordx4 v[{16+4*s}:{19+4*s}], v2, {self.S(SRD_WS)}, s58 offen sc1 nt\ns_add_u32 s58, s58, 32768")
        a(f"v_max_f32_dpp v234, v232, v232 row_ror:1 {D}\nv_max_f32_dpp v234, v234, v234 row_ror:2 {D}\nv_max_f32_dpp v234, v234, v234 row_ror:4 {D}")
        a("v_sub_f32 v232, v232, v234\nv_exp_f32 v232, v232\nv_mul_f32 v232, v232, v233")
        a(f"v_add_f32_dpp v234, v232, v232 row_ror:1 {D}\nv_add_f32_dpp v234, v234, v234 row_ror:2 {D}\nv_add_f32_dpp v234, v234, v234 row_ror:4 {D}")
        a("v_rcp_f32 v234, v234\nv_mul_f32 v232, v232, v234")
        for s in range(8):
            a(f"s_waitcnt vmcnt({7-s})")
            op = "v_mul_f32_dpp" if s == 0 else "v_fmac_f32_dpp"
            for q in range(4): a(f"v_lshlrev_b32 v{240+q}, 16, v{16+4*s+q}\nv_and_b32 v{16+4*s+q}, s98, v{16+4*s+q}")
            for q in range(4): a(f"{op} v{224+2*q}, v232, v{240+q} row_newbcast:{s} {D}\n{op} v{225+2*q}, v232, v{16+4*s+q} row_newbcast:{s} {D}")
        for q in range(4): a(f"v_cvt_pk_bf16_f32 v{244+q}, v{224+2*q}, v{225+2*q}")
        a(f"s_lshl_b32 s54, {sW}, 10\nv_add_u32 v5, s54, v2")
        a("ds_write_b128 v5, v[244:247]")
        a.c("P7: ctx = O_lat @ w_uv")
        a(f"v_lshrrev_b32 v5, 3, v3\nv_lshlrev_b32 v5, 10, v5\nv_lshl_add_u32 v5, v4, 6, v5\ns_lshl_b32 s54, {sW}, 8\nv_add_u32 v5, s54, v5")
        a("s_waitcnt lgkmcnt(0)\ns_barrier")
        for p in range(2):
            for k in range(4): a(f"ds_read_b128 v[{16+16*p+4*k}:{19+16*p+4*k}], v5 offset:{2048*p+16*k}")
        a("s_waitcnt lgkmcnt(0)")
        self.proj_mfma(list(range(32)), 16, 16, 48, 224, lambda t: f"a[{4*t}:{4*t+3}]", True)
        self.proj_store_partials(224, 5)
        if self.EPI:
            a(f"v_lshrrev_b32 v5, 2, v3\nv_lshlrev_b32 v5, 9, v5\nv_lshl_add_u32 v5, v4, 5, v5\ns_lshl_b32 s54, {sW}, 7\ns_add_u32 s54, s54, {LDS_X}\nv_add_u32 v5, s54, v5")
            self.sum4_pack(5, 0, 16, 64)
            for r in range(4): a(f"v_min_u32 v{64+r}, -2, v{64+r}")
            self.ctx_store(64)
            self.stamp(8)
            self.srd(SRD_D, P_OUT, 9216)
            self.final_reduce2(1, self.o.get('lazy', 4))
            self.stamp(9)
        else:
            self.operand_from_partials(5, 16, 48)
            self.stamp(6)
            self.oproj_compute_publish(1)
            self.stamp(7)
        if self.EPI: pass
        elif self.o.get('t2', 1):
            self.srd(SRD_D, P_OUT, 9216)
            self.final_reduce2(1, 0)
            self.stamp(8)
            self.final_reduce2(0, self.o.get('lazy', 4))
            self.stamp(9)
        else:
            self.final_reduce(1)
            self.stamp(8)
        self.write_stamps()
        a("s_endpgm")
        a.label("L_roleH_end")

    def role_c(self):
        a = self.a
        D = "row_mask:0xf bank_mask:0xf"
        a.label("L_roleC")
        if self.o.get('noC'): a("s_endpgm")
        if self.o.get('ltest'): a("s_branch L_roleH")
        if self.o.get('wtest'):
            fl = ['sc1', 'sc1 nt', 'sc0 sc1', '', 'nt', 'sc0 sc1 nt'][self.o.get('wfl', 0)]
            a("s_waitcnt lgkmcnt(0)")
            self.srd(SRD_WS, P_WS, 0x20000000)
            a(f"s_lshl_b32 s54, {sH}, 2\ns_add_u32 s54, s54, {sW}\ns_lshl_b32 s54, s54, {10 if self.o.get('wdense') else 16}")
            if self.o.get('wdel'):
                for _ in range(self.o['wdel']): a("s_sleep 127")
            if self.o.get('wstag'):
                a(f"s_lshl_b32 s55, {sH}, 2\ns_add_u32 s55, s55, {sW}\nL_stag:\ns_sleep {self.o['wstag']}\ns_sub_u32 s55, s55, 1\ns_cbranch_scc0 L_stag")
            a(f"s_lshl_b32 s55, {sH}, 2\ns_add_u32 s55, s55, {sW}\ns_lshl_b32 s55, s55, 7\ns_add_u32 s55, s55, {WS_CTR}")
            a(f"s_mov_b64 exec, 1\nv_mov_b32 v5, 0\nbuffer_store_dword v5, v5, {self.S(SRD_WS)}, s55 offen sc1\ns_mov_b64 exec, -1\ns_add_u32 s54, s54, 0x2000000")
            per = self.o.get('wper', 999)
            mode = self.o.get('wld', 0)
            if self.o.get('wsp'): a("v_lshlrev_b32 v2, 7, v1")
            stp = 8192 if self.o.get('wsp') else 131072 if self.o.get('wdense') else 1024
            for k in range(self.o['wtest']):
                if self.o.get('wsl'): a(f"s_sleep {self.o['wsl']}")
                if mode == 2 and k == per: a("s_xor_b32 s54, s54, 0x40000")
                a(f"s_add_u32 s55, s54, {stp * (k % per)}")
                if mode == 1 or (mode == 2 and k >= per): a(f"buffer_load_dwordx4 v[24:27], v2, {self.S(SRD_WS)}, s55 offen {fl}")
                elif mode == 3: a(f"v_lshlrev_b32 v2, 3, v1\nbuffer_store_dwordx2 v[20:21], v2, {self.S(SRD_WS)}, s55 offen {fl}")
                elif mode == 4: a(f"s_mov_b64 exec, 1\nbuffer_atomic_add v20, v2, {self.S(SRD_WS)}, s54 offen sc0\nbuffer_atomic_add v21, v2, {self.S(SRD_WS)}, s54 offen sc0\nbuffer_atomic_add v22, v2, {self.S(SRD_WS)}, s54 offen sc0\nbuffer_atomic_add v23, v2, {self.S(SRD_WS)}, s54 offen sc0\ns_waitcnt vmcnt(30)")
                elif mode == 5: a(f"v_lshlrev_b32 v2, 5, v1\nv_and_b32 v2, 0xf80, v2\nv_and_b32 v5, 3, v1\nv_lshl_add_u32 v2, v5, 4, v2\nbuffer_store_dwordx4 v[20:23], v2, {self.S(SRD_WS)}, s55 offen {fl}")
                else: a(f"buffer_store_dwordx4 v[20:23], v2, {self.S(SRD_WS)}, s55 offen {fl}")
            a("s_waitcnt vmcnt(0)\ns_endpgm")
        a.vm_reset(); a.vm_slack = 1
        a("s_mov_b32 s101, " + str(self.o.get("spin", 100000)))
        if self.stamps: a(f"s_add_u32 s2, {sH}, 32")
        self.code_prefetch("L_roleC", "L_roleC_end", 2)
        for r in range(4): a(f"v_mov_b32 v{20+r}, -1")
        self.y_addr(); self.y_soff(0)
        a("s_waitcnt lgkmcnt(0)")
        self.srd(SRD_WS, P_WS, 0x20000000)
        self.y_store(20, 20, 20)
        self.qa_clear(self.QS - 1)
        a.c("clear the partial slots of (h, b=w) and zero the tile counter")
        self.part_addr(NSH)
        self.is_shared(); a(f"s_mov_b32 s56, {(1 << NSH) - 1}\ns_cselect_b32 s56, {(1 << NSD) - 1}, s56\ns_mov_b32 s57, 0\ns_cbranch_scc0 L_cclr")
        for k in range(NSH // 4, NSD // 4): a("buffer_store_dwordx4 v[20:23], " + self.part_io(k))
        a(f"s_lshl_b32 s55, {sH}, 2\ns_add_u32 s55, s55, {sW}\ns_lshl_b32 s55, s55, 7\ns_add_u32 s55, s55, {WS_CTR}")
        a(f"v_mov_b32 v5, 0\ns_mov_b64 exec, 1\nbuffer_store_dword v5, v5, {self.S(SRD_WS)}, s55 offen sc1")
        if self.EPI == 2: a(f"s_lshl_b32 s55, {sH}, 7\ns_add_u32 s55, s55, {WS_UCTR}\nbuffer_store_dword v5, v5, {self.S(SRD_WS)}, s55 offen sc1")
        a.c("(m, l) of this workgroup's split: 256 B")
        a(f"s_lshl_b32 s55, s53, 8\ns_add_u32 s55, s55, {WS_BML}\ns_mov_b64 exec, 0xffff\nbuffer_store_dwordx4 v[20:23], v2, {self.S(SRD_WS)}, s55 offen sc1\ns_mov_b64 exec, -1")
        a.label("L_cclr")
        for k in range(NSH // 4): a("buffer_store_dwordx4 v[20:23], " + self.part_io(k))
        a(f"s_mov_b64 exec, s[56:57]\nbuffer_store_dwordx4 v[20:23], v2, {self.S(SRD_WS)}, s59 offen offset:2048 sc1\ns_mov_b64 exec, -1")
        mC = a.mark()
        if self.o.get('noH'): a("s_endpgm")
        self.srd(SRD_C, P_WQ, 576 * 8192); self.srd(SRD_D, P_AX, 4608); self.srd(SRD_A, P_CKV, 0x1000000)
        T, row0 = (18, 288) if self.QS == 2 else (36, 0)
        self.x_loads(SRD_D, 48, T, row0)
        self.wq_addr(T, row0)
        mW = []
        for g in range(T // 9):
            self.wq_loads(range(9 * g, 9 * g + 9), SRD_C, 'nt', 0); mW.append(a.mark())
        self.selectors()
        a.wait_for(mC); a("s_barrier")
        self.signal(None)
        a.c("c_kv DMA setup: b = c>>3, s = c&7; voffsets v[20:23]")
        a("v_lshlrev_b32 v5, 2, v4\nv_xor_b32 v5, v5, v3\nv_lshlrev_b32 v6, 10, v4")
        for i in range(4):
            a(f"v_xor_b32 v7, {i}, v5\nv_lshl_add_u32 v{20+i}, v7, 4, v6")
            if i: a(f"v_add_u32 v{20+i}, {4096*i}, v{20+i}")
        a(f"s_lshl_b32 s58, s53, 19\ns_lshl_b32 s54, {sW}, 8\ns_add_u32 s58, s58, s54")
        a(f"s_lshl_b32 s63, {sW}, 15\ns_mov_b32 s59, s63")
        self.ckv_dma()
        for g in range(T // 9):
            a.wait_for(mW[g])
            self.proj_mfma(list(range(9 * g, 9 * g + 9)), 48, xs(T), 96, 112, lambda t: f"a[{4*t}:{4*t+3}]", g == 0)
        self.qa_publish(112)
        self.stamp(1)
        if self.o.get('onlyA'):
            a("s_waitcnt vmcnt(0)")
            self.write_stamps(); a("s_endpgm")
        for _ in range(3): self.ckv_dma()
        RB = [('a', 96), ('a', 128), ('a', 160), ('a', 192), ('a', 224), ('v', 224)][:self.o.get('nb', 6)]
        NB = len(RB)
        a.c("the next tiles wait in registers")
        for k in range(NB):
            a("s_waitcnt vmcnt(40)")
            if k == NB - 2: self.flags_issue(27, 18)
            for t in self.ckv_regs(RB[k]): a(t)
        self.srd(SRD_B, P_WO, 32 * 147456)
        self.oproj_addr(48)
        a("v_add_u32 v26, s63, v2")
        a.c("LDS addresses: v[32:39] QK reads, v[40:47] tr reads, v[28:31] X (own, ^1, ^2, ^3); v19 q_abs voffset")
        a("v_and_b32 v24, 31, v1\nv_lshrrev_b32 v25, 5, v1\nv_lshlrev_b32 v19, 10, v24\nv_lshl_add_u32 v19, v25, 4, v19")
        a(f"s_lshr_b32 s96, s53, 3\ns_lshl_b32 s96, s96, 15\ns_lshl_b32 s55, {sW}, 8\ns_add_u32 s96, s96, s55\ns_add_u32 s96, s96, {WS_QABS}")
        a("v_and_b32 v5, 3, v24\nv_lshlrev_b32 v5, 2, v5\nv_bfe_u32 v6, v24, 2, 2\nv_or_b32 v5, v5, v6\nv_xor_b32 v5, v5, v25")
        a("v_lshlrev_b32 v32, 8, v24\nv_lshl_add_u32 v32, v5, 4, v32\nv_add_u32 v32, s63, v32")
        a("v_bfe_u32 v5, v1, 2, 2")
        a("v_lshl_add_u32 v6, v25, 2, v5\nv_lshlrev_b32 v40, 8, v6")
        a("v_and_b32 v6, 1, v1\nv_lshl_add_u32 v40, v6, 3, v40")
        a("v_bfe_u32 v6, v1, 4, 1\nv_lshlrev_b32 v6, 1, v6\nv_bfe_u32 v7, v1, 1, 1\nv_or_b32 v6, v6, v7\nv_xor_b32 v6, v6, v25")
        a("v_lshl_or_b32 v6, v5, 2, v6\nv_lshl_add_u32 v40, v6, 4, v40\nv_add_u32 v40, s63, v40")
        for k in range(1, 8): a(f"v_xor_b32 v{32+k}, {32*k}, v32\nv_xor_b32 v{40+k}, {32*k}, v40")
        a(f"s_lshl_b32 s54, {sW}, 12\ns_add_u32 s54, s54, {LDS_X}\nv_add_u32 v28, s54, v2")
        for k in range(1, 4): a(f"v_xor_b32 v{28+k}, {4096*k}, v28")
        for r in range(64): a(f"v_mov_b32 v{64+r}, 0")
        a("v_mov_b32 v216, 0xff800000\nv_mov_b32 v217, 0")
        a("s_waitcnt vmcnt(0)")
        self.stamp(2)
        self.flags_check(27, 18)
        a("s_barrier")
        QKr = lambda sl: [f"ds_read_b128 a[{32+4*kk}:{35+4*kk}], v{32+kk} offset:{8192*sl}" for kk in range(8)]
        for t in QKr(0): a(t)
        self.stamp(3)
        a.c("P3: q_abs fragments a[0:31]: lane (head=l&31, hh=l>>5); only the lanes still missing are read again")
        qpoll, qok = a.newlabel('qpoll'), a.newlabel('qok')
        a.label(qpoll)
        for kk in range(8):
            a(f"buffer_load_dwordx4 v[{128+4*kk}:{131+4*kk}], v19, {self.S(SRD_WS)}, s96 offen offset:{32*kk} sc1")
        a("s_waitcnt vmcnt(0)")
        self.umax(5, list(range(128, 160)), 6)
        a(f"v_cmp_eq_u32 vcc, -1, v5\ns_mov_b64 exec, vcc\ns_cbranch_execz {qok}\ns_sub_u32 s101, s101, 1\ns_cbranch_scc0 {qpoll}\ns_mov_b32 s101, 0")
        a.label(qok)
        a("s_mov_b64 exec, -1")
        for r in range(32): a(f"v_accvgpr_write_b32 a{r}, v{128+r}")
        QKm = [f"v_mfma_f32_32x32x16_bf16 v[128:143], a[{32+4*kk}:{35+4*kk}], a[{4*kk}:{4*kk+3}], " + ("0" if kk == 0 else "v[128:143]") for kk in range(8)]
        TR = lambda sl: [f"ds_read_b64_tr_b16 a[{64+(T*2+t)*4+2*u}:{65+(T*2+t)*4+2*u}], v{40+2*T+u} offset:{8192*sl+(16*t+8*u)*256}"
                         for t in range(2) for T in range(4) for u in range(2)]
        Xw = lambda xb: [f"ds_write_b128 v28, v[{128+4*q}:{131+4*q}] offset:{16384*xb+1024*q}" for q in range(4)]
        Xr = lambda xb: [f"ds_read_b128 v[{128+16*k+4*q}:{131+16*k+4*q}], v{28+k} offset:{16384*xb+1024*q}" for k in range(1, 4) for q in range(4)]
        a("s_waitcnt lgkmcnt(0)")
        self.stamp(10)
        for t in QKm + Xw(0): a(t)
        a("s_waitcnt lgkmcnt(0)\ns_barrier")
        for t in Xr(0): a(t)
        wr_it = {t: (t - 4 if t < 4 + NB else t - 2) for t in range(4, 16)}
        free_at = {}
        pend = []
        for t in range(4 + NB, 16):
            pend += [(x, wr_it[t - NB], t, i) for i, x in enumerate(self.ckv_regs(RB[(t - 4) % NB]))]
        for t in range(4, 16): free_at[RB[(t - 4) % NB]] = wr_it[t]
        main, extra = self.oproj_list(SRD_B, 'a', 48)
        LATE = self.o.get('late', 0)
        main = main[:32 - 8 * LATE]
        if self.EPI: main, extra = [], []
        NM = len(main)
        wo = [(x, free_at.get(('a', 96 + 32 * (k // 8)), -1), 99, k) for k, x in enumerate(main)] + [(x, free_at.get(('a', 224), -1), 99, 0) for x in extra]
        pend += wo
        pace = [int(c, 16) for c in str(self.o.get('pace', '8866666666666200'))]
        lmark = {}
        PV = lambda t, T: f"v_mfma_f32_32x32x16_bf16 v[{64+16*T}:{79+16*T}], a[{64+(T*2+t)*4}:{67+(T*2+t)*4}], v[{208+4*t}:{211+4*t}], v[{64+16*T}:{79+16*T}]"
        def emit(items):
            for t in items:
                if isinstance(t, str): a(t)
                else: t()
        def load(p):
            def f():
                a(p[0]); lmark[(p[2], p[3])] = a.mark()
            return f
        def write(t, i):
            def f():
                if (t, i) in lmark: a.wait_for(lmark[(t, i)])
                else: assert t < 4 + NB
                fb, base = RB[(t - 4) % NB]
                a(f"ds_write_b128 v26, {fb}[{base+4*i}:{base+4*i+3}] offset:{8192*(t&3)+1024*i}")
            return f
        for it in range(16):
            sl, nx, last = it & 3, (it + 1) & 3, it == 15
            early, late = [], []
            if it in (2, 4, 8, 12): self.stamp({2: 11, 4: 12, 8: 13, 12: 14}[it])
            while len(early) + len(late) < pace[it] and pend and pend[0][1] <= it:
                p = pend.pop(0)
                (early if p[1] < it and len(early) < pace[it] // 2 and not late else late).append(p)
            wt = [t for t in wr_it if wr_it[t] == it]
            if not last:
                for t in QKr(nx): a(t)
                a("s_waitcnt lgkmcnt(8)")
            else: a("s_waitcnt lgkmcnt(0)")
            emit(mix([f"v_add_f32 v{144+r}, v{144+r}, v{128+r}" for r in range(16)], [load(p) for p in early[:1]], 8, 4))
            v = [f"v_add_f32 v{160+r}, v{160+r}, v{176+r}" for r in range(16)]
            v += [f"v_add_f32 v{144+r}, v{144+r}, v{160+r}" for r in range(16)]
            v += ["v_max3_f32 v218, v144, v145, v146", "v_max3_f32 v219, v147, v148, v149", "v_max3_f32 v220, v150, v151, v152", "v_max3_f32 v221, v153, v154, v155",
                  "v_max3_f32 v218, v218, v156, v157", "v_max3_f32 v219, v219, v158, v159", "v_max3_f32 v218, v218, v219, v220", "v_max_f32 v218, v218, v221"]
            a("s_waitcnt lgkmcnt(0)")
            tr = TR(sl)
            side = [("" if last else QKm[k] + "\n") + tr[2*k] + "\n" + tr[2*k+1] for k in range(8)]
            for t in mix(v, side, 5): a(t)
            a("v_mov_b32 v219, v218\nv_permlane32_swap_b32 v218, v219\nv_max3_f32 v218, v218, v219, v216")
            a("v_sub_f32 v220, v216, v218\nv_mov_b32 v216, v218\nv_exp_f32 v220, v220")
            emit(mix([f"v_sub_f32 v{192+r}, v{144+r}, v218" for r in range(16)], [load(p) for p in early[1:]], 5, 2))
            v = [f"v_exp_f32 v{192+r}, v{192+r}" for r in range(16)]
            for t in mix(v, [] if last else Xw(nx & 1), 4): a(t)
            a("v_mul_f32 v217, v217, v220")
            for r in range(8): a(f"v_cvt_pk_bf16_f32 v{208+r}, v{192+2*r}, v{193+2*r}")
            for r in range(16): a(f"v_mul_f32 v{64+r}, v{64+r}, v220")
            a("s_waitcnt lgkmcnt(0)")
            if not last: a("s_barrier")
            side = []
            for i in range(8):
                g = [write(t, i) for t in wt]
                n = (len(late) * (i + 1) + 7) // 8 - (len(late) * i + 7) // 8
                side.append(g)
            k = 0
            for j, p in enumerate(late):
                pos = max(k, j * 8 // max(len(late), 1), p[3] % 8 if p[1] == it and p[2] != 99 or (p[1] == it and p in wo[:NM]) else 0)
                if p[1] == it and p in wo[NM:]: pos = 7
                side[pos].append(load(p)); k = pos
            xr = [] if last else Xr(nx & 1)
            for T in range(4):
                a(PV(0, T))
                if T < 3:
                    v = [f"v_mul_f32 v{80+16*T+r}, v{80+16*T+r}, v220" for r in range(16)]
                    v = mix(v, xr[4*T:4*T+4], 2)
                    v = mix(v, [PV(1, T)], 1, 8)
                else:
                    v = [f"v_add_f32 v{192+r}, v{192+r}, v{200+r}" for r in range(8)] + [PV(1, T)]
                    v += [f"v_add_f32 v{192+r}, v{192+r}, v{196+r}" for r in range(4)]
                    v += ["v_add_f32 v192, v192, v193", "v_add_f32 v194, v194, v195", "v_add_f32 v192, v192, v194", "v_add_f32 v217, v217, v192"]
                grp = [(lambda g: (lambda: emit(g)))(g) for g in side[2*T:2*T+2]]
                emit(mix(v, grp, 8, 4))
        assert all(p[2] == 99 for p in pend)
        rest = [p[0] for p in pend]
        a("s_waitcnt lgkmcnt(0)")
        self.stamp(4)
        a.c("P5: normalise, transpose through the wave's own ring region, publish")
        a("v_mov_b32 v219, v217\nv_permlane32_swap_b32 v217, v219\nv_add_f32 v217, v217, v219\nv_rcp_f32 v220, v217")
        a(f"v_mul_u32_u24 v5, 272, v24\nv_lshl_add_u32 v5, v25, 3, v5\nv_add_u32 v5, s63, v5")
        for r in range(64): a(f"v_mul_f32 v{64+r}, v{64+r}, v220")
        for r in range(32): a(f"v_cvt_pk_bf16_f32 v{128+r}, v{64+2*r}, v{65+2*r}")
        for r in (216, 217): a(f"v_min_u32 v{r}, -2, v{r}")
        a(f"v_mov_b32_dpp v218, v216 quad_perm:[1,1,3,3] {D}\nv_mov_b32_dpp v219, v217 quad_perm:[1,1,3,3] {D}")
        for k in range(16): a(f"ds_write_b64 v5, v[{128+2*k}:{129+2*k}] offset:{16*k}")
        a(f"v_mul_u32_u24 v6, 272, v4\nv_lshl_add_u32 v6, v3, 4, v6\nv_add_u32 v6, s63, v6")
        a("s_waitcnt lgkmcnt(0)")
        for k in range(8): a(f"ds_read_b128 v[{64+4*k}:{67+4*k}], v6 offset:{272*4*k}")
        a("v_lshlrev_b32 v7, 10, v4\nv_lshl_add_u32 v7, v3, 4, v7")
        a(f"s_lshl_b32 s54, s53, 15\ns_lshl_b32 s55, {sW}, 8\ns_add_u32 s54, s54, s55\ns_add_u32 s54, s54, {WS_BO}")
        for k in range(8):
            a(f"s_waitcnt lgkmcnt({7-k})")
            a(f"buffer_store_dwordx4 v[{64+4*k}:{67+4*k}], v7, {self.S(SRD_WS)}, s54 offen sc1")
            a("s_add_u32 s54, s54, 4096")
        mP = a.mark()
        n1 = self.o.get('wo1', 8)
        for t in rest[:n1]: a(t)
        rest = rest[n1:]
        a(f"v_lshlrev_b32 v5, 3, v1\ns_lshl_b32 s54, s53, 8\ns_add_u32 s54, s54, {WS_BML}\ns_cmp_eq_u32 {sW}, 0\ns_cselect_b32 s56, 0x55555555, 0\ns_mov_b32 s57, 0")
        a.wait_for(mP); a("s_barrier")
        a(f"s_mov_b64 exec, s[56:57]\nbuffer_store_dwordx4 v[216:219], v5, {self.S(SRD_WS)}, s54 offen sc1\ns_mov_b64 exec, -1")
        self.stamp(15)
        if self.EPI:
            self.srd(SRD_D, P_OUT, 9216)
            self.final_reduce2(0, self.o.get('lazy', 4))
            self.stamp(9)
            self.write_stamps()
            a("s_endpgm")
            a.label("L_roleC_end")
            return
        self.issue_capped(rest)
        self.stamp(5)
        a("s_waitcnt vmcnt(0)")
        if LATE:
            for r in list(range(96, 224 - 32 * LATE)) + list(range(224, 256)): a(f"v_accvgpr_read_b32 v{r}, a{r}")
            a("s_mov_b32 s24, 0x05040100\ns_mov_b32 s25, 0x07060302")
            for rb in range(4 - LATE): self.tr_main(rb)
            self.tr_extra(0, 16)
        else:
            for r in range(96, 256): a(f"v_accvgpr_read_b32 v{r}, a{r}")
            self.oproj_transpose()
        self.stamp(6)
        if self.o.get('t2', 1):
            a.c("P9: wait for the partials of (h, b=w)")
            a(f"s_mov_b32 s97, {f2u(LOG2E)}\ns_mov_b32 s98, 0xffff0000")
            self.y_addr(); self.y_soff(0)
            a("v_mov_b32 v0, v6\nv_mov_b32 v1, v7\ns_mov_b32 s60, s54\ns_mov_b32 s61, s55\ns_mov_b32 s62, s56")
            self.pv_masks()
            for r in range(16, 44): a(f"v_mov_b32 v{r}, -1")
            a(f"s_lshl_b32 s54, {sW}, 9\nv_lshl_add_u32 v5, v3, 4, s54\nv_and_b32 v6, 1, v4\nv_lshl_add_u32 v5, v6, 3, v5\nv_lshrrev_b32 v6, 1, v4\nv_lshl_add_u32 v5, v6, 8, v5")
            a("v_lshrrev_b32 v7, 2, v3\nv_lshlrev_b32 v7, 9, v7\nv_lshl_add_u32 v7, v4, 4, v7")
            self.part_addr(NSH)
            if LATE:
                self.trigger(self.o.get('thr', 1), 44, 45)
                self.stamp(5)
                self.late_loads(self.oproj_list(SRD_B, 'v', 48)[0][NM:], LATE)
                self.stamp(6)
            if self.o.get('tal'): a("s_branch L_ctail"); a.raw(".p2align 12"); a.label("L_ctail")
            if self.o.get('dry'):
                a.c("first pass: no waiting, stores out of range (brings the code of the tail into the instruction cache)")
                a(f"s_mov_b32 s22, s101\ns_mov_b32 s101, 0\ns_mov_b32 s46, 0\ns_mov_b32 s23, 1")
                a.label("L_cpass")
            self.is_shared(); a("s_cbranch_scc1 L_cshared")
            self.combine2(NSH)
            a("s_branch L_cmerged")
            a.label("L_cshared")
            self.combine2(NSD)
            a.label("L_cmerged")
            a("ds_write_b64 v5, v[224:225]")
            a("s_waitcnt lgkmcnt(0)\ns_barrier")
            for kk in range(4): a(f"ds_read_b128 v[{48+4*kk}:{51+4*kk}], v7 offset:{64*kk}")
            self.oproj2(0, 1, 60, 0 if LATE else None)
            self.stamp(8)
            if self.o.get('dry'):
                a("s_cmp_eq_u32 s23, 0\ns_cbranch_scc1 L_cdone\ns_mov_b32 s23, 0\ns_mov_b32 s101, s22\ns_waitcnt vmcnt(0)\ns_mov_b32 s46, 0x20000000\nv_mov_b32 v44, v5")
                self.pv_masks()
                a("v_mov_b32 v5, v44")
                for r in range(16, 44): a(f"v_mov_b32 v{r}, -1")
                a("s_barrier\ns_branch L_cpass")
                a.label("L_cdone")
        else:
            a.c("P9: wait for the partials of (h, b=w)")
            self.srd(SRD_D, P_OUT, 9216)
            a(f"s_mov_b32 s97, {f2u(LOG2E)}\ns_mov_b32 s98, 0xffff0000")
            a(f"s_lshl_b32 s54, {sW}, 9\nv_lshl_add_u32 v5, v3, 4, s54\nv_lshl_add_u32 v5, v4, 2, v5")
            a("v_lshrrev_b32 v7, 2, v3\nv_lshlrev_b32 v7, 9, v7\nv_lshl_add_u32 v7, v4, 4, v7")
            self.is_shared(); a("s_cbranch_scc1 L_cshared")
            self.combine(NSH)
            a("s_branch L_cmerged")
            a.label("L_cshared")
            self.combine(NSD)
            a.label("L_cmerged")
            a("v_cvt_pk_bf16_f32 v224, v224, v225\nds_write_b32 v5, v224")
            a("s_waitcnt lgkmcnt(0)\ns_barrier")
            for kk in range(4): a(f"ds_read_b128 v[{48+4*kk}:{51+4*kk}], v7 offset:{64*kk}")
            a("s_waitcnt lgkmcnt(0)")
            self.oproj_compute_publish(0)
            self.stamp(8)
            self.final_reduce(0)
            self.stamp(9)
        self.write_stamps()
        a("s_endpgm")
        a.label("L_roleC_end")

    def build(self, header):
        a = self.a
        a.raw(header)
        al = '.p2align 12\n' if self.o.get('al', 1) else ''
        a.raw(f'.amdgcn_target "amdgcn-amd-amdhsa--gfx950"\n.text\n.globl {KN}_kernel\n{al}.p2align 8\n.type {KN}_kernel,@function\n{KN}_kernel:')
        a("s_cmp_ge_u32 s2, 256\ns_cbranch_scc1 L_exit")
        a("s_load_dwordx16 s[4:19], s[0:1], 0\ns_load_dwordx8 s[20:27], s[0:1], 64\ns_load_dwordx4 s[28:31], s[0:1], 96")
        if self.stamps:
            for i in range(64, 96): a(f"s_mov_b32 s{i}, 0")
        self.stamp(0)
        a("v_lshrrev_b32 v2, 6, v0\nv_and_b32 v1, 63, v0\nv_readfirstlane_b32 s3, v2")
        a("v_and_b32 v3, 15, v0\nv_bfe_u32 v4, v0, 4, 2\nv_lshlrev_b32 v2, 4, v1")
        a(f"s_and_b32 {sH}, s2, 31\ns_mov_b32 s53, {sH}")
        a("s_cmp_lt_u32 s2, 32\ns_cbranch_scc1 L_roleH\ns_cmp_lt_u32 s2, 64\ns_cbranch_scc1 L_roleC")
        self.role_a()
        self.role_h()
        self.role_c()
        a.label("L_exit")
        a("s_endpgm")
        a.raw(f'''.section .rodata,"a"
.p2align 6
.amdhsa_kernel {KN}_kernel
  .amdhsa_next_free_vgpr 512
  .amdhsa_next_free_sgpr 102
  .amdhsa_accum_offset 256
  .amdhsa_group_segment_fixed_size 0
  .amdhsa_kernarg_size 112
  .amdhsa_user_sgpr_count 2
  .amdhsa_user_sgpr_kernarg_segment_ptr 1
  .amdhsa_system_sgpr_workgroup_id_x 1
.end_amdhsa_kernel''')
        return a.text()

def header(stamps):
    ref = open(os.path.join(os.path.dirname(os.path.abspath(__file__)), '..', KN + '.s.ref')).read().split('\n')
    top = [l for l in ref if l.startswith(';') and '@launch' not in l][:17]
    h = '\n'.join(top) + '\n; @launch grid=(256,1,1) block=(256,1,1) lds=163840'
    if stamps: h += '\n; groups=128,256'
    h += '\n; generated by gen/gen.py (hand-written generator)'
    return h

if __name__ == '__main__':
    import argparse
    ap = argparse.ArgumentParser()
    ap.add_argument('-o', default=os.path.join(os.path.dirname(os.path.abspath(__file__)), '..', KN + '.s'))
    ap.add_argument('--stamps', action='store_true')
    ap.add_argument('--wq', default='')
    ap.add_argument('--opt', action='append', default=[])
    args = ap.parse_args()
    g = Gen(stamps=args.stamps, wq_flags=args.wq, opts={k.split('=')[0]: (k.split('=')[1] if k.startswith('pace') else int(k.split('=')[1])) if '=' in k else 1 for k in args.opt})
    t = g.build(header(args.stamps))
    open(args.o, 'w').write(t)
    print(args.o, len(t), 'bytes; auto nops', g.a.nops)
```

```python
import sys, os, math, struct
sys.path.insert(0, os.path.dirname(os.path.abspath(__file__)))
from asmlib import Asm

KN = "concat_heads__mha_block_cached__compressed_kv_cla__decode"
def f2u(x): return struct.unpack('<I', struct.pack('<f', x))[0]
LOG2E = 1.4426950408889634
SCALE = 128 ** -0.5
M24 = (1 << 32) // 24 + 1
M18 = (1 << 32) // 18 + 1

WS_APART, WS_QABS, WS_BO, WS_BML, WS_Y, WS_YPART = 0x800000, 0x100000, 0x200000, 0x300000, 0x400000, 0x80000
WS_QA, WS_CTR, WS_CTX, WS_UCTR = 0x500000, 0x520000, 0x530000, 0x528000
WS_STAMP = 0x10000000
OOB_WS = 0x20000000
DBG_S1, DBG_S2 = 128, 192
LDS_X = 131072
P_AX, P_K, P_V, P_WQ, P_WO, P_BX, P_CKV, P_BWQ, P_WUK, P_WUV, P_BWO, P_OUT, P_DBG, P_WS = [4 + 2 * i for i in range(14)]
SRD_A, SRD_B, SRD_C, SRD_WS, SRD_D = 32, 36, 40, 44, 48
sW, sH, sJ = 's3', 's52', 's53'
NSH, NSD = 8, 24

def xs(T): return {36: 20, 18: 12}[T]

def mix(main, side, every, start=0):
    out, k = [], 0
    for i, m in enumerate(main):
        if i >= start and (i - start) % every == 0 and k < len(side):
            out.append(side[k]); k += 1
        out.append(m)
    return out + side[k:]

class Stream:
    def __init__(self, a, ahead):
        self.a, self.ahead, self.items, self.marks = a, ahead, [], []
    def add(self, texts):
        self.items += texts
        return len(self.items)
    def issue(self, upto):
        while len(self.marks) < min(upto, len(self.items)):
            self.a(self.items[len(self.marks)]); self.marks.append(self.a.mark())
    def need(self, n):
        self.issue(n)
        self.a.wait_for(self.marks[n - 1])
        self.issue(n + self.ahead)

class Gen:
    def __init__(self, stamps=False, wq_flags='', opts=None):
        self.a = Asm(); self.stamps = stamps; self.nst = 0; self.wq_flags = wq_flags
        self.o = dict(xs=1, sat=2, cdn=1, cst=256, g4=28, g2=40, tb='8cfg.bde', rot=0, sig1=1, fpos=7, qs=1, npre=2, pace='6666666666660000', qsl=4, abar=1)
        self.o.update(opts or {})
        self.RING = self.o.get('ring', 2); self.NX = self.o.get('nx', 10); self.ST = 32
        self.EPI = self.o.get('epi', 1)
        d = self.o.get('drain', 1080008) % 1000000
        self.DRAIN = (d // 10000, d // 100 % 100, d % 100) if self.EPI and d else None
        if self.EPI == 2: self.DRAIN = (1, 0, 0)
        self.EARLY = self.o.get('early', 0) if self.EPI == 1 else 0
        if self.EARLY: self.DRAIN = (0, 0, 0)
        self.WR, self.WT = (192, 128) if self.EARLY else (128, 64)
        self.CST = self.o.get('cst', 128); self.CTR = WS_CTR if self.CST <= 128 else 0x1000000
        g = [(n, self.o.get(f'g{n}', 0)) for n in (8, 6, 4, 3, 2) if self.o.get(f'g{n}', 0)]
        assert sum(n * c for n, c in g) <= 256
        self.GUIDE = [(n, sum(c for _, c in g[:i+1])) for i, (n, _) in enumerate(g)][::-1]
        tb = str(self.o.get('tb', '89ab.cde')).replace('.', '')
        self.TB = [int(c, 36) for c in tb]
        self.NB = [b for b in range(8, 20) if b not in self.TB]
        self.DB = [b for b in range(8, 20) if b not in self.TB[:4]]
        self.QS = self.o.get('qs', 2)
    def srd(self, d, p, nbytes):
        self.a(f"s_mov_b32 s{d}, s{p}\ns_mov_b32 s{d+1}, s{p+1}\ns_mov_b32 s{d+2}, {nbytes}\ns_mov_b32 s{d+3}, 0x20000")
    def S(self, d): return f"s[{d}:{d+3}]"
    def stamp(self, i):
        if self.stamps: self.a(f"s_memrealtime s[{64+2*i}:{65+2*i}]")
    def tlog(self):
        if self.o.get('tlog'): self.a("s_waitcnt lgkmcnt(0)\nv_writelane_b32 v31, s86, m0\ns_add_u32 m0, m0, 1\ns_memrealtime s[86:87]")
    def write_stamps(self):
        if not self.stamps: return
        a = self.a
        a("s_waitcnt lgkmcnt(0)")
        a(f"s_lshl_b32 s54, s2, 2\ns_add_u32 s54, s54, {sW}\ns_lshl_b32 s54, s54, 7\ns_add_u32 s54, s54, {WS_STAMP}")
        if self.o.get('tlog'):
            a(f"s_lshl_b32 s55, s54, 1\ns_sub_u32 s55, s55, {WS_STAMP - 0x100000}\nv_and_b32 v2, 63, v1\nv_lshlrev_b32 v2, 2, v2\nv_writelane_b32 v31, m0, 63\nbuffer_store_dword v31, v2, {self.S(SRD_WS)}, s55 offen")
        a("v_mov_b32 v2, 0")
        for i in range(8):
            for k in range(4): a(f"v_mov_b32 v{4+k}, s{64+4*i+k}")
            a(f"buffer_store_dwordx4 v[4:7], v2, {self.S(SRD_WS)}, s54 offen offset:{16*i}")
            a("s_nop 1")

    def selectors(self):
        a = self.a
        a("v_and_b32 v5, 1, v3")
        a("v_cmp_eq_u32 vcc, 1, v5")
        a("v_mov_b32 v5, 0x0c0c0100\nv_mov_b32 v6, 0x01000c0c\nv_cndmask_b32 v5, v5, v6, vcc")
        a("v_mov_b32 v6, 0x0c0c0302\nv_mov_b32 v7, 0x03020c0c\nv_cndmask_b32 v6, v6, v7, vcc")
        a("v_bfe_u32 v7, v3, 1, 2")
        a("v_mov_b32 v16, 0x0c0c0c0c")
        for q in range(4):
            a(f"v_cmp_eq_u32 vcc, {q}, v7")
            a(f"v_cndmask_b32 v{8+2*q}, v16, v5, vcc\nv_cndmask_b32 v{9+2*q}, v16, v6, vcc")

    def proj_mfma(self, ts, act, actp, tmp, acc, wreg, first):
        a = self.a
        for t in ts:
            for p in range(2):
                tb = tmp + ((2 * t + p) & 3) * 4
                src = act + p * actp + (t >> 1)
                for q in range(4):
                    a(f"v_perm_b32 v{tb+q}, v{src}, v{src}, v{8+2*q+(t&1)}")
                c = "0" if (first and t == ts[0]) else f"v[{acc+4*p}:{acc+4*p+3}]"
                a(f"v_mfma_f32_16x16x32_bf16 v[{acc+4*p}:{acc+4*p+3}], v[{tb}:{tb+3}], {wreg(t)}, {c}")

    def proj_store_partials(self, acc, va, base=LDS_X):
        a = self.a
        a(f"v_lshrrev_b32 v{va}, 1, v4\nv_lshlrev_b32 v{va}, 9, v{va}")
        a(f"v_lshl_add_u32 v{va}, v3, 5, v{va}")
        a(f"v_and_b32 v{va+1}, 1, v4\nv_lshl_add_u32 v{va}, v{va+1}, 4, v{va}")
        a(f"s_lshl_b32 s54, {sW}, 11\ns_add_u32 s54, s54, {base}\nv_add_u32 v{va}, s54, v{va}")
        a(f"ds_write_b128 v{va}, v[{acc}:{acc+3}]\nds_write_b128 v{va}, v[{acc+4}:{acc+7}] offset:1024")
        a("s_waitcnt lgkmcnt(0)\ns_barrier")

    def sum4_pack(self, va, off, tmp, dst):
        a = self.a
        for w in range(4):
            a(f"ds_read_b128 v[{tmp+8*w}:{tmp+8*w+3}], v{va} offset:{off+2048*w}")
            a(f"ds_read_b128 v[{tmp+8*w+4}:{tmp+8*w+7}], v{va} offset:{off+2048*w+16}")
        a("s_waitcnt lgkmcnt(0)")
        for e in range(8):
            a(f"v_add_f32 v{tmp+e}, v{tmp+e}, v{tmp+8+e}\nv_add_f32 v{tmp+16+e}, v{tmp+16+e}, v{tmp+24+e}")
        for e in range(8): a(f"v_add_f32 v{tmp+e}, v{tmp+e}, v{tmp+16+e}")
        for q in range(4): a(f"v_cvt_pk_bf16_f32 v{dst+q}, v{tmp+2*q}, v{tmp+2*q+1}")

    def operand_from_partials(self, va, tmp, dst):
        a = self.a
        a(f"v_lshrrev_b32 v{va}, 2, v3\nv_lshlrev_b32 v{va}, 9, v{va}\nv_lshl_add_u32 v{va}, v4, 5, v{va}")
        a(f"v_add_u32 v{va}, {LDS_X}, v{va}")
        for kk in range(4): self.sum4_pack(va, kk * 128, tmp, dst + 4 * kk)

    def x_loads(self, srd, act, T=36, row0=0):
        a = self.a
        a(f"v_lshrrev_b32 v5, 3, v3\nv_mul_u32_u24 v5, 1152, v5\nv_mul_u32_u24 v6, {2*T}, v4\nv_add_u32 v5, v5, v6")
        a(f"s_mul_i32 s54, {sW}, {8*T}")
        if row0: a(f"s_add_u32 s54, s54, {2*row0}")
        for p in range(2):
            r = act + xs(T) * p
            for k in range(T // 8):
                a(f"buffer_load_dwordx4 v[{r+4*k}:{r+4*k+3}], v5, {self.S(srd)}, s54 offen offset:{2304*p+16*k}")
            k = T // 8
            if T == 36: a(f"buffer_load_dwordx2 v[{r+4*k}:{r+4*k+1}], v5, {self.S(srd)}, s54 offen offset:{2304*p+16*k}")
            else: a(f"buffer_load_dword v{r+4*k}, v5, {self.S(srd)}, s54 offen offset:{2304*p+16*k}")

    def code_prefetch(self, start, end, n, junk=122):
        a = self.a
        if self.o.get('nopfh') and junk == 122: return
        lab = a.newlabel('pc')
        a("s_getpc_b64 s[56:57]")
        a.label(lab)
        a(f"s_sub_u32 s56, s56, {lab}-{start}\ns_subb_u32 s57, s57, 0")
        a(f"v_lshlrev_b32 v5, 7, v0")
        for i in range(n):
            a(f"v_min_u32 v6, {end}-{start}-4, v5")
            a(f"global_load_dword v{junk}, v6, s[56:57]")
            if i + 1 < n: a("v_add_u32 v5, 32768, v5")

    def kreg(self, t): return 64 + 16 * t
    def scatter(self, d, src, bits, tmp):
        runs = []
        for i, b in enumerate(bits):
            if runs and runs[-1][0] == b - i: runs[-1][1] |= 1 << b
            else: runs.append([b - i, 1 << b])
        for k, (sh, m) in enumerate(runs):
            r = tmp if k else d
            self.a(f"s_lshl_b32 {r}, {src}, {sh}\ns_and_b32 {r}, {r}, {m:#x}" + (f"\ns_or_b32 {d}, {d}, {tmp}" if k else ""))
    def a_loads(self, t, which):
        a = self.a
        if self.o.get('sat'):
            for f, srd, r0 in (('v', SRD_A, self.kreg(t)), ('a', SRD_B, 16 * t)):
                if 'KV'[f == 'a'] in which:
                    for j in range(4): a(f"buffer_load_dwordx4 {f}[{r0+4*j}:{r0+4*j+3}], v{(0, 18, 48, 49)[j]}, {self.S(srd)}, s60 offen nt")
            return
        if 'K' in which:
            for j in range(4):
                r = self.kreg(t) + 4 * j
                a(f"buffer_load_dwordx4 v[{r}:{r+3}], v2, {self.S(SRD_A)}, s60 offen offset:{1024*j} nt")
        if 'V' in which:
            for j in range(4):
                r = 16 * t + 4 * j
                a(f"buffer_load_dwordx4 a[{r}:{r+3}], v2, {self.S(SRD_B)}, s60 offen offset:{1024*j} nt")

    def a_body(self, t, ring, drain=0):
        a = self.a
        R = self.RING
        D = "row_mask:0xf bank_mask"
        kb = self.kreg(t)
        noat, nocomp = self.o.get('noat'), self.o.get('nocomp')
        sat = self.o.get('sat', 0)
        N = 8 if noat or sat else 9
        def ticket():
            lab = a.newlabel('notk')
            a(f"s_cmp_eq_u32 s18, 0\ns_cbranch_scc0 {lab}\ns_mov_b32 s16, 1\ns_atomic_add s16, s[{P_WS}:{P_WS+1}], s57 glc\n{lab}:")
        def refill_k():
            vr = 48 + t
            if sat:
                lab = a.newlabel('have')
                a.c("s18 tiles left from s17 on; ticket k is worth several tiles while the pool is full")
                a(f"s_cmp_lg_u32 s18, 0\ns_cbranch_scc1 {lab}\ns_waitcnt lgkmcnt(0)\ns_mov_b32 s17, s16\ns_mov_b32 s18, 1")
                prev = 1
                for n, K in self.GUIDE:
                    a(f"s_min_u32 s54, s16, {K}\ns_cselect_b32 s18, {n}, s18\ns_mul_i32 s54, s54, {n-prev}\ns_add_u32 s17, s17, s54"); prev = n
                if self.DRAIN: a(f"s_cmp_ge_u32 s17, s19\ns_cbranch_scc1 L_adrain{t}")
                a("s_add_u32 s54, s17, s99")
                self.scatter("s61", "s54", self.DB, "s55")
                a(f"s_cmp_lt_u32 s17, 256\ns_cselect_b32 s7, s11, 0x8000000\ns_cselect_b32 s18, s18, 9\ns_cselect_b32 s63, 0, 1\ns_mov_b32 s6, {sum(1 << b for b in self.DB):#x}")
                a(f"{lab}:\ns_or_b32 s60, s61, s7")
                self.a_loads(t, 'K')
                a(f"s_orn2_b32 s61, s61, s6\ns_add_u32 s61, s61, 1\ns_and_b32 s61, s61, s6\ns_add_u32 s58, s58, {self.STEP}\ns_sub_u32 s18, s18, 1\ns_sub_u32 s62, s62, s63")
                if sat == 1: ticket()
                return
            if noat: a("s_mov_b32 s54, s16\ns_cmp_ge_u32 s58, s59\ns_cselect_b32 s55, 24, 0\ns_add_u32 s16, s16, s55")
            else: a(f"v_readfirstlane_b32 s54, v{vr}\nv_mov_b32 v{vr}, 1")
            a("s_cmp_ge_u32 s58, s61\ns_cselect_b32 s55, s57, s53")
            a("s_lshl_b32 s54, s54, 12\ns_add_u32 s60, s54, s99")
            a("s_cmp_lt_u32 s58, s59\ns_cselect_b32 s60, s58, s60\ns_cselect_b32 s54, 0, s54\ns_cselect_b64 s[6:7], s[8:9], s[10:11]")
            if self.EPI == 2: a(f"s_cmp_ge_u32 s54, 0x100000\ns_cbranch_scc1 L_adrain{t}")
            elif self.DRAIN: a(f"s_cmp_ge_u32 s54, s19\ns_cbranch_scc1 L_adrain{t}")
            a(f"s_add_u32 s58, s58, {self.STEP}\ns_and_b32 s60, s60, s6\ns_or_b32 s60, s60, s7")
            if self.EPI != 2: a("s_cmp_lt_u32 s54, 0x100000\ns_cselect_b32 s60, s60, 0x8000000\ns_cselect_b32 s55, s55, s53\ns_addc_u32 s62, s62, -1")
            if not noat: a(f"buffer_atomic_add v{vr}, v18, {self.S(SRD_WS)}, s55 offen sc0" + ['', ' sc1', ' nt', ' sc1 nt'][self.o.get('afl', 0)])
            self.a_loads(t, 'K')
        if ring: a(f"s_waitcnt vmcnt({N*(R-1)+4})"); self.tlog()
        n1, n2, n3 = self.DRAIN or (0, 0, 0)
        if drain == 2:
            self.epi_loads(n1, n1 + n2)
            a(f"s_waitcnt vmcnt({4+n1+n2})"); self.tlog(); self.tlog()
        if nocomp:
            if ring:
                refill_k(); a(f"s_waitcnt vmcnt({N*R-4})"); self.a_loads(t, 'V')
                if sat == 2: ticket()
            return
        for e in range(4 if drain != 1 else 0):
            for j in range(4):
                c = "0" if e == 0 else f"v{20+j}"
                a(f"v_dot2_f32_bf16 v{20+j}, v{kb+4*j+e}, v{4+e}, {c}")
        if ring: refill_k()
        if drain == 1 and self.EPI == 2: a(f"buffer_atomic_add v31, v18, {self.S(SRD_WS)}, s21 offen sc0")
        elif drain == 1: self.epi_loads(0, n1)
        if drain == 2: self.epi_loads(n1 + n2, n1 + n2 + n3)
        a(f"v_add_f32_dpp v24, v20, v20 row_ror:8 {D}:0x3\nv_add_f32_dpp v25, v22, v22 row_ror:8 {D}:0x3")
        a(f"v_add_f32_dpp v24, v21, v21 row_ror:8 {D}:0xc\nv_add_f32_dpp v25, v23, v23 row_ror:8 {D}:0xc")
        a(f"v_add_f32_dpp v26, v24, v24 row_shl:4 {D}:0x5\nv_add_f32_dpp v26, v25, v25 row_shr:4 {D}:0xa")
        a(f"v_add_f32_dpp v26, v26, v26 quad_perm:[1,0,3,2] {D}:0xf")
        a(f"v_add_f32_dpp v26, v26, v26 quad_perm:[2,3,0,1] {D}:0xf")
        a.c("scores rounded as the reference does: bf16(bf16(q.k) * scale)")
        a("v_cvt_pk_bf16_f32 v26, v26, v26\nv_and_b32 v26, s98, v26\nv_mul_f32 v26, s96, v26")
        a("v_cvt_pk_bf16_f32 v26, v26, v26\nv_and_b32 v26, s98, v26")
        a.c("running max")
        a(f"v_max_f32_dpp v27, v26, v26 row_ror:4 {D}:0xf")
        a(f"v_max_f32_dpp v27, v27, v27 row_ror:8 {D}:0xf")
        a("v_mov_b32 v28, v27\nv_permlane16_swap_b32 v27, v28\nv_max_f32 v27, v27, v28")
        a("v_mov_b32 v28, v27\nv_permlane32_swap_b32 v27, v28\nv_max3_f32 v27, v27, v28, v16")
        a("v_sub_f32 v28, v16, v27\nv_sub_f32 v29, v26, v27\nv_mul_f32 v28, s97, v28\nv_mul_f32 v29, s97, v29")
        a("v_exp_f32 v28, v28\nv_exp_f32 v29, v29\nv_mov_b32 v16, v27")
        a("v_fma_f32 v17, v17, v28, v29\nv_cvt_pk_bf16_f32 v29, v29, v29")
        for r in range(4): a(f"v_mul_f32 v{12+r}, v{12+r}, v28")
        if ring: a(f"s_waitcnt vmcnt({N*R-4})")
        if drain: a(f"s_waitcnt vmcnt({N+n1 if drain == 1 else n1+n2+n3})")
        for j in range(4):
            bank = [0, 2, 1, 3][j]
            tb = 32 + 4 * j
            for q in range(4):
                a(f"v_and_b32_dpp v{tb+q}, v29, v{8+q} row_newbcast:{4*bank} {D}:0xf")
        for j in range(4):
            tb = 32 + 4 * j
            a(f"v_mfma_f32_16x16x32_bf16 v[12:15], v[{tb}:{tb+3}], a[{16*t+4*j}:{16*t+4*j+3}], v[12:15]")
        if ring: self.a_loads(t, 'V')
        if ring and sat == 2: ticket()

    def wq_loads(self, ts, srd, flags, base=112):
        a = self.a
        for t in ts:
            a(f"buffer_load_dwordx4 a[{base+4*t}:{base+3+4*t}], v120, {self.S(srd)}, s61 offen {flags}")
            a("s_add_u32 s61, s61, 8192")

    def wq_addr(self, T=36, row0=0):
        a = self.a
        a(f"v_mul_u32_u24 v120, {T*8192}, v4\nv_lshl_add_u32 v120, v3, 4, v120")
        a(f"s_mul_i32 s61, {sW}, {4*T*8192}\ns_lshl_b32 s54, {sH}, 8\ns_add_u32 s61, s61, s54")
        if row0: a(f"s_add_u32 s61, s61, {row0*8192}")

    def shared_sel(self, d, g):
        m = self.o.get('dsel', 1)
        if m == 0: self.a(f"s_mov_b32 {d}, 1")
        elif m == 1: self.a(f"s_add_u32 {d}, {g}, {sW}\ns_and_b32 {d}, {d}, 3")
        elif m == 2: self.a(f"s_mov_b32 {d}, {sW}")
        elif m == 3: self.a(f"s_lshr_b32 {d}, {g}, 1\ns_add_u32 {d}, {d}, {sW}\ns_and_b32 {d}, {d}, 3")
    def is_shared(self):
        self.a(f"s_lshr_b32 s55, {sH}, 2")
        self.shared_sel("s55", "s55")
        self.a(f"s_and_b32 s54, {sH}, 3\ns_cmp_eq_u32 s54, s55")
    def a_pack(self, d, ml):
        a = self.a
        D = "row_mask:0xf bank_mask"
        a(f"v_add_f32_dpp v17, v17, v17 row_ror:4 {D}:0xf")
        a(f"v_add_f32_dpp v17, v17, v17 row_ror:8 {D}:0xf")
        a("v_mov_b32 v28, v17\nv_permlane16_swap_b32 v17, v28\nv_add_f32 v17, v17, v28")
        a(f"v_mov_b32 v28, v17\nv_permlane32_swap_b32 v17, v28\nv_add_f32 v{ml+1}, v17, v28")
        if ml != 16: a(f"v_mov_b32 v{ml}, v16")
        a(f"v_cvt_pk_bf16_f32 v{d}, v12, v13\nv_cvt_pk_bf16_f32 v{d+1}, v14, v15")
    def a_reset(self):
        for r in range(4): self.a(f"v_mov_b32 v{12+r}, 0")
        self.a("v_mov_b32 v16, 0xff800000\nv_mov_b32 v17, 0")
    def epi_setup(self):
        a = self.a
        a(f"s_bitcmp1_b32 s23, 0\ns_cselect_b32 s{SRD_C}, s{P_BWO}, s{P_WO}\ns_cselect_b32 s{SRD_C+1}, s{P_BWO+1}, s{P_WO+1}\ns_cselect_b32 s25, {WS_YPART}, 0\ns_add_u32 s25, s25, {WS_Y}")
        a(f"s_mov_b32 s{SRD_C+2}, {32 * 147456}\ns_mov_b32 s{SRD_C+3}, 0x20000")
        a(f"s_lshr_b32 s54, s23, 1\ns_mul_i32 s54, s54, 3\ns_add_u32 s54, s54, {sW}\ns_and_b32 s23, s23, 1")
        a("s_mul_i32 s24, s26, 147456\ns_lshl_b32 s55, s54, 7\ns_add_u32 s24, s24, s55")
        a("s_lshl_b32 s54, s54, 13\ns_lshl_b32 s55, s26, 7\ns_add_u32 s54, s54, s55\ns_add_u32 s25, s25, s54")
        a(f"s_lshl_b32 s27, s26, 10\ns_add_u32 s27, s27, {WS_CTX}")
        a(f"s_lshl_b32 s22, s26, 2\ns_add_u32 s22, s22, {sW}\ns_lshl_b32 s22, s22, 13\ns_add_u32 s22, s22, {WS_APART}")
        a("s_lshr_b32 s55, s26, 2")
        self.shared_sel("s55", "s55")
        a("s_and_b32 s54, s26, 3\ns_cmp_eq_u32 s54, s55\ns_cselect_b32 s54, 7, 1\ns_cselect_b32 s55, 5, 1\ns_cselect_b32 s26, 2, 0\ns_or_b32 s23, s23, s26")
        a("v_and_b32 v30, s54, v3\nv_min_u32 v30, s55, v30\nv_lshl_add_u32 v30, v30, 2, v4\nv_lshlrev_b32 v30, 4, v30\nv_add_u32 v30, 6144, v30")
        a("v_lshrrev_b32 v19, 3, v3\nv_lshl_add_u32 v19, v19, 2, v4\nv_mul_u32_u24 v19, 9216, v19\nv_and_b32 v5, 7, v3\nv_lshl_add_u32 v19, v5, 4, v19")
    def epi_head(self):
        self.a("s_sub_u32 s23, s2, 64\ns_and_b32 s26, s23, 7\ns_lshr_b32 s23, s23, 3\ns_mul_i32 s27, s23, 43\ns_lshr_b32 s27, s27, 8")
        self.a("s_lshl_b32 s26, s26, 2\ns_add_u32 s26, s26, s27\ns_mul_i32 s27, s27, 6\ns_sub_u32 s23, s23, s27")
    def epi_loads(self, lo=0, hi=16, srd=SRD_C):
        for k in range(lo, hi):
            e = k & 7
            adv = {3: 4608, 7: 73728 - 4608}.get(e)
            if self.o.get('wlin'):
                if k == 0: self.a("s_lshr_b32 s59, s25, 13\ns_and_b32 s59, s59, 15\ns_mul_i32 s59, s59, 16256\ns_add_u32 s24, s24, s59")
                self.a(f"buffer_load_dwordx4 v[{128+4*k}:{131+4*k}], v2, {self.S(srd)}, s24 offen offset:{1024*(e&3)} nt" + ("\ns_add_u32 s24, s24, 4096" if adv else ""))
                continue
            self.a(f"buffer_load_dwordx4 v[{self.WR+4*k}:{self.WR+3+4*k}], v19, {self.S(srd)}, s24 offen offset:{1152*(e&3)} nt" + (f"\ns_add_u32 s24, s24, {adv}" if adv and k != 15 else ""))
    def epi_addr(self, rot=False):
        self.stamp(12)
        self.a("v_and_b32 v3, 15, v1\nv_lshrrev_b32 v4, 4, v1\ns_mov_b32 s60, 0x05040100\ns_mov_b32 s61, 0x07060302")
        if rot: self.a("v_add_u32 v0, s23, v4\nv_and_b32 v0, 3, v0")
        self.a(f"v_mul_u32_u24 v0, {18*4096}, v{0 if rot else 4}\nv_bfe_u32 v5, v1, 2, 1\nv_lshl_add_u32 v0, v5, 12, v0\nv_and_b32 v5, 3, v1\nv_lshl_add_u32 v0, v5, 5, v0")
        self.a("v_bfe_u32 v5, v1, 3, 1\nv_lshl_add_u32 v0, v5, 4, v0")
    def epi_tr(self, later, mid):
        early = sum(self.DRAIN or ()) if self.EPI != 2 else 0
        if self.EARLY:
            if later is not None: return
            self.a("s_mov_b32 s54, 0x05040100\ns_mov_b32 s55, 0x07060302")
            for kk in range(2):
                for q in range(4):
                    for j in range(8):
                        lo = self.WR + 32 * kk + 8 * q + (j >> 1)
                        self.a(f"v_perm_b32 v{self.WT+32*kk+4*j+q}, v{lo+4}, v{lo}, s{54+(j&1)}")
            return
        for kk in range(2):
            for q in range(4):
                last = 8 * kk + 2 * q + 1
                if (kk, q) == (0, 0): self.stamp(10)
                self.a(f"s_waitcnt vmcnt({later + 15 - last + (mid if last < early else 0)})")
                if (kk, q) == (0, 0): self.stamp(11)
                if (kk, q) == (1, 0): self.stamp(9)
                for j in range(8):
                    lo = 128 + 32 * kk + 8 * q + (j >> 1)
                    self.a(f"v_perm_b32 v{64+32*kk+4*j+q}, v{lo+4}, v{lo}, s{60+(j&1)}")
    def epi_mfma(self, lds, ac=224):
        a = self.a
        mf = lambda kk, j: f"v_mfma_f32_16x16x32_bf16 v[{ac+4*j}:{ac+3+4*j}], v[{48+4*kk}:{51+4*kk}], v[{self.WT+32*kk+4*j}:{self.WT+3+32*kk+4*j}], " + ("0" if kk == 0 else f"v[{ac+4*j}:{ac+3+4*j}]")
        ad = lambda j: f"v_add_f32_dpp v{56+(j&3)}, v{ac+4*j+1-(j>>2)}, v{ac+4*j+(j>>2)} row_ror:8 row_mask:0xf bank_mask:{0x3 if j < 4 else 0xc:#x}"
        if lds: a("s_waitcnt lgkmcnt(1)")
        for j in range(8): a(mf(0, j))
        if lds: a("s_waitcnt lgkmcnt(0)")
        for j in range(8):
            a(mf(1, j))
            a(f"s_nop 0\n" + ad(j - 3) if j >= 3 else "s_nop 1")
        for j in range(5, 8): a(ad(j) + f"\nv_min_u32 v{56+j-5}, -2, v{56+j-5}")
        a(f"v_min_u32 v59, -2, v59\nbuffer_store_dwordx4 v[56:59], v0, {self.S(SRD_WS)}, s25 offen sc1")
        a.label("L_eend" + "AB"[not lds])
        self.stamp(15)
        self.write_stamps()
        a("s_endpgm")
    def epi_rest(self):
        a = self.a
        early = sum(self.DRAIN or ())
        if early < 16 and not self.EARLY:
            lab = a.newlabel('enone')
            a(f"s_cmp_eq_u32 {sW}, 3\ns_cbranch_scc1 {lab}")
            self.epi_loads(early, 16)
            a.label(lab)
        self.epi_addr()
    def epilogue(self):
        a = self.a
        a("s_mov_b32 s58, s22\ns_add_u32 s59, s22, 4096\ns_cmp_eq_u32 s23, 2\ns_cbranch_scc1 L_eshared\ns_cmp_lg_u32 s23, 0\ns_cbranch_scc1 L_epiB")
        self.combine2(NSH, True)
        a("s_branch L_emerged")
        a.label("L_eshared")
        self.combine2(NSD, True)
        a.label("L_emerged")
        a("ds_write_b64 v5, v[224:225]")
        a(f"s_cmp_eq_u32 {sW}, 3\ns_waitcnt lgkmcnt(0)\ns_barrier\ns_cbranch_scc1 L_eendA")
        for kk in range(2): a(f"ds_read_b128 v[{48+4*kk}:{51+4*kk}], v7 offset:{128*kk}")
        self.epi_mfma(True)
        a.label("L_epiB")
        a(f"s_cmp_eq_u32 {sW}, 3\ns_cbranch_scc1 L_eendB")
        a("v_bfe_u32 v6, v1, 2, 2\nv_lshlrev_b32 v6, 6, v6\nv_and_b32 v5, 48, v1\nv_add_u32 v6, v6, v5\nv_and_b32 v5, 1, v1\nv_lshl_add_u32 v6, v5, 8, v6")
        loads = [(f"buffer_load_dwordx4 v[{48+4*kk}:{51+4*kk}], v6, {self.S(SRD_WS)}, s27 offen offset:{512*kk} sc1", 48 + 4 * kk) for kk in range(2)]
        for t, r in loads: a(t)
        self.epi_rest()
        self.epi_tr(0, 2)
        self.stamp(13)
        a("s_waitcnt vmcnt(0)")
        self.masked_poll(loads, 236, 1, pre=True)
        self.stamp(14)
        self.epi_mfma(False)
    def dyn_setup(self):
        a = self.a
        assert self.o.get('dsel', 1) == 1
        self.srd(SRD_C, P_WO, 32 * 147456); self.srd(SRD_D, P_BWO, 32 * 147456)
        a(f"s_mul_i32 s24, s26, 147456\ns_lshl_b32 s25, s26, 7\ns_add_u32 s21, s25, {WS_UCTR}\ns_add_u32 s25, s25, {WS_Y}")
        a(f"s_lshl_b32 s27, s26, 10\ns_add_u32 s27, s27, {WS_CTX}\ns_lshl_b32 s22, s26, 15\ns_add_u32 s22, s22, {WS_APART}")
        a("s_lshr_b32 s23, s26, 2\ns_sub_u32 s23, s26, s23\ns_and_b32 s23, s23, 3")
        a.c("lane (r, i): i < 8 slot 4 min(i, 5) + r of the shared pool, else slot 4 (i & 1) + r of home pool min((i - 8) / 2, 2)")
        a("v_min_u32 v30, 5, v3\nv_and_b32 v5, 1, v3\nv_cmp_gt_u32 vcc, 8, v3\nv_cndmask_b32 v30, v5, v30, vcc\nv_lshl_add_u32 v30, v30, 2, v4\nv_lshlrev_b32 v30, 4, v30")
        a("v_lshrrev_b32 v5, 1, v3\nv_max_u32 v5, 3, v5\nv_min_u32 v5, 6, v5\nv_add_u32 v5, s23, v5\nv_add_u32 v5, 1, v5\nv_and_b32 v5, 3, v5")
        a("v_lshl_add_u32 v30, v5, 13, v30\nv_add_u32 v30, 6144, v30\nv_mov_b32 v31, 1")
        a("v_lshrrev_b32 v19, 3, v3\nv_lshl_add_u32 v19, v19, 2, v4\nv_mul_u32_u24 v19, 9216, v19\nv_and_b32 v5, 7, v3\nv_lshl_add_u32 v19, v5, 4, v19")
    def dyn_epilogue(self):
        a = self.a
        D = "row_mask:0xf bank_mask"
        ws = self.S(SRD_WS)
        a("s_waitcnt vmcnt(1)\nv_readfirstlane_b32 s54, v31")
        if self.stamps: a("s_mul_i32 s76, s54, 10\ns_add_u32 s76, s76, s64")
        a("s_cmp_ge_u32 s54, 18\ns_cbranch_scc1 L_eendB\ns_lshl_b32 s55, s54, 7\ns_add_u32 s24, s24, s55\ns_lshl_b32 s55, s54, 13\ns_add_u32 s25, s25, s55")
        a("s_cmp_ge_u32 s54, 9\ns_cbranch_scc1 L_epiB")
        self.epi_loads()
        ml = f"buffer_load_dwordx4 v[40:43], v30, {ws}, s22 offen sc1"
        a(ml)
        self.epi_addr(True)
        a.c("pools in the order shared, home 0..2: s54, s55 (+4096), s56..s58")
        a("s_lshl_b32 s54, s23, 13")
        for j in range(3): a(f"s_add_u32 s{56+j}, s54, {8192*(j+1)}\ns_and_b32 s{56+j}, s{56+j}, 0x6000\ns_add_u32 s{56+j}, s{56+j}, s22")
        a("s_add_u32 s54, s54, s22\ns_add_u32 s55, s54, 4096\ns_mov_b32 s20, 0xff3fff3f\ns_mov_b32 s21, s20")
        for r in range(192, 240): a(f"v_mov_b32 v{r}, -1")
        for q in range(4): a(f"v_mov_b32_dpp v{12+q}, v{8+q} row_ror:8 {D}:0xf")
        a(f"s_lshl_b32 s59, {sW}, 10\nv_lshl_add_u32 v5, v3, 4, s59\nv_and_b32 v6, 1, v4\nv_lshl_add_u32 v5, v6, 3, v5\nv_lshrrev_b32 v6, 1, v4\nv_lshl_add_u32 v5, v6, 8, v5")
        a("v_lshrrev_b32 v7, 2, v3\nv_lshl_add_u32 v7, v7, 8, s59\nv_lshl_add_u32 v7, v4, 4, v7\nv_and_b32 v6, 1, v1\nv_lshl_add_u32 v7, v6, 6, v7")
        for p in range(7): a(f"s_mov_b64 s[{4+2*p}:{5+2*p}], -1")
        self.epi_tr(1, 0)
        self.stamp(13)
        a.label("L_elight")
        a(f"s_waitcnt vmcnt(0)\nv_cmp_ne_u32 vcc, -1, v40\ns_bcnt1_i32_b64 s59, vcc\ns_cmp_ge_u32 s59, {self.o.get('lt', 24)}\ns_cbranch_scc1 L_eheavy")
        a(f"s_sleep 2\n{ml}\ns_sub_u32 s101, s101, 1\ns_cbranch_scc0 L_elight\ns_mov_b32 s101, 0")
        a.c("each group of registers is read again for the lanes that still hold the cleared pattern; late results repeat what is there")
        a.label("L_eheavy")
        a("s_mov_b64 s[18:19], 0")
        src = [(54, 0), (54, 2048), (55, 0), (56, 0), (57, 0), (58, 0)]
        for p in range(7):
            a(f"s_mov_b64 exec, s[{4+2*p}:{5+2*p}]\ns_cbranch_execz L_eskip{p}")
            if p == 0: a(f"?v_max3_u32 v44, v40, v41, v42\n?v_max_u32 v44, v44, v43\n?v_cmpx_eq_u32 s[4:5], -1, v44\n?{ml}")
            else:
                r = 184 + 8 * p
                so, off = src[p - 1]
                a(f"?v_max3_u32 v44, v{r}, v{r+1}, v{r+2}\n?v_max3_u32 v45, v{r+3}, v{r+4}, v{r+5}\n?v_max3_u32 v44, v44, v{r+6}, v{r+7}\n?v_max_u32 v44, v44, v45")
                a(f"?v_cmpx_eq_u32 s[{4+2*p}:{5+2*p}], -1, v44")
                for k in range(2): a(f"?buffer_load_dwordx4 v[{r+4*k}:{r+4*k+3}], v2, {ws}, s{so} offen offset:{off+1024*k} sc1")
            a(f"?s_or_b64 s[18:19], s[18:19], s[{4+2*p}:{5+2*p}]")
            a.label(f"L_eskip{p}")
        a(f"s_mov_b64 exec, -1\ns_cmp_eq_u64 s[18:19], 0\ns_cbranch_scc1 L_eseen\n?s_waitcnt vmcnt({self.o.get('pw', 3)})\n?s_sub_u32 s101, s101, 1\n?s_cbranch_scc0 L_eheavy")
        a.label("L_eseen")
        self.stamp(14)
        def allred(op, r, src, t):
            o = [f"{op}_dpp v{r}, v{src}, v{src} quad_perm:[1,0,3,2] {D}:0xf", f"{op}_dpp v{r}, v{r}, v{r} quad_perm:[2,3,0,1] {D}:0x3", f"{op}_dpp v{r}, v{r}, v{r} row_half_mirror {D}:0x3"]
            for p in (16, 32): o += [f"v_mov_b32 v{t}, v{r}", f"v_permlane{p}_swap_b32 v{r}, v{t}", f"{op} v{r}, v{r}, v{t}"]
            return o
        a("v_cndmask_b32 v47, 0, v41, s[20:21]")
        for t in allred("v_max_f32", 44, 40, 45): a(t)
        a("v_sub_f32 v45, v40, v44\nv_mul_f32 v45, s97, v45\nv_exp_f32 v45, v45\nv_cvt_pk_bf16_f32 v46, v45, v45\nv_and_b32 v45, s98, v46\nv_mul_f32 v47, v47, v45")
        fm, prev = [], None
        for n, k in enumerate([8, 9, 10, 11, 0, 1, 2, 3, 4, 5, 6, 7]):
            tb = 240 + 4 * (n & 3)
            pos = 0 if k < 6 else (k - 4) // 2
            fm += [f"v_and_b32_dpp v{tb+q}, v46, v{8+4*(pos&1)+q} row_newbcast:{k if k < 6 else k + 2} {D}:0xf" for q in range(4)]
            if prev: fm.append(prev)
            ac = 20 + 4 * (pos >> 1)
            prev = f"v_mfma_f32_16x16x32_bf16 v[{ac}:{ac+3}], v[{tb}:{tb+3}], v[{192+4*k}:{195+4*k}], " + ("0" if k in (0, 8) else f"v[{ac}:{ac+3}]")
        side = allred("v_add_f32", 47, 47, 45) + ["v_rcp_f32 v47, v47"]
        side += [f"v_mov_b32_dpp v{28+(pos>>1)}, v47 row_newbcast:{0 if pos == 0 else 6 + 2*pos} row_mask:{0xc if pos & 1 else 0x3:#x} bank_mask:0xf" for pos in (2, 3, 0, 1)]
        for t in mix(fm, side, 4, 2): a(t)
        a("v_mul_f32 v24, v24, v29\n" + prev)
        for e in range(1, 4): a(f"v_mul_f32 v{24+e}, v{24+e}, v29")
        a("v_cvt_pk_bf16_f32 v24, v24, v25\nv_cvt_pk_bf16_f32 v25, v26, v27\nds_write_b64 v5, v[24:25] offset:512")
        for e in range(4): a(f"v_mul_f32 v{20+e}, v{20+e}, v28")
        a("v_cvt_pk_bf16_f32 v20, v20, v21\nv_cvt_pk_bf16_f32 v21, v22, v23\nds_write_b64 v5, v[20:21]")
        if self.stamps: a("s_waitcnt lgkmcnt(0)")
        for kk in range(2): a(f"ds_read_b128 v[{48+4*kk}:{51+4*kk}], v7 offset:{128*kk}")
        self.epi_mfma(True, 128)
        a.label("L_epiB")
        a(f"s_sub_u32 s24, s24, {9*128}\ns_add_u32 s25, s25, {WS_YPART - 9*8192}")
        a("v_bfe_u32 v6, v1, 2, 2\nv_lshlrev_b32 v6, 6, v6\nv_and_b32 v5, 48, v1\nv_add_u32 v6, v6, v5\nv_and_b32 v5, 1, v1\nv_lshl_add_u32 v6, v5, 8, v6")
        self.epi_loads(0, 16, SRD_D)
        loads = [(f"buffer_load_dwordx4 v[{48+4*kk}:{51+4*kk}], v6, {ws}, s27 offen offset:{512*kk} sc1", 48 + 4 * kk) for kk in range(2)]
        for t, r in loads: a(t)
        self.epi_addr()
        self.epi_tr(2, 0)
        self.stamp(13)
        a("s_waitcnt vmcnt(0)")
        self.masked_poll(loads, 236, 1, pre=True)
        self.stamp(14)
        self.epi_mfma(False, 128)
    def ctx_store(self, r0):
        a = self.a
        a(f"v_bfe_u32 v6, v1, 2, 2\nv_lshlrev_b32 v6, 6, v6\nv_and_b32 v5, 48, v1\nv_add_u32 v6, v6, v5\nv_and_b32 v5, 3, v1\nv_lshl_add_u32 v6, v5, 29, v6")
        a(f"s_lshl_b32 s54, {sH}, 10\ns_lshl_b32 s55, {sW}, 8\ns_add_u32 s54, s54, s55\ns_add_u32 s54, s54, {WS_CTX}")
        a(f"buffer_store_dwordx4 v[{r0}:{r0+3}], v6, {self.S(SRD_WS)}, s54 offen sc1")
    def a_take_q(self, tag, so):
        a = self.a
        a.label(f"L_aq{tag}")
        a(f"v_max3_u32 v20, v60, v61, v62\nv_max_u32 v20, v20, v63\nv_cmp_eq_u32 vcc, -1, v20\ns_cbranch_vccz L_aq{tag}_ok")
        c = a.vm_count; a.vm_count = False
        a(f"?buffer_load_dwordx4 v[60:63], v59, {self.S(SRD_WS)}, {so} offen sc1\n?s_waitcnt vmcnt(0)")
        a.vm_count = c
        a(f"?s_sub_u32 s101, s101, 1\n?s_cbranch_scc0 L_aq{tag}\n?s_mov_b32 s101, 0")
        a.label(f"L_aq{tag}_ok")
        if self.QS == 1:
            for r in range(4): a(f"v_mov_b32 v{4+r}, v{60+r}")
            return
        for r in range(4): a(f"v_mov_b32 v{20+r}, v{60+r}")
        for r in range(4): a(f"v_permlane16_swap_b32 v{60+r}, v{20+r}")
        for r in range(4): a(f"v_add_f32 v{60+r}, v{60+r}, v{20+r}")
        a("v_cvt_pk_bf16_f32 v4, v60, v61\nv_cvt_pk_bf16_f32 v5, v62, v63\nv_mov_b32 v6, v4\nv_mov_b32 v7, v5")
        a("v_permlane32_swap_b32 v4, v6\nv_permlane32_swap_b32 v5, v7")

    def role_a(self):
        a = self.a
        R, NX, ST = self.RING, self.NX, self.ST
        assert R == 2 and R + NX <= 12 and ST >= NX + 2 * R and (ST - NX) % R == 0
        il = self.o.get('il', 1)
        STEP = self.STEP = 32768 if il else 4096
        a.label("L_roleA")
        if self.o.get('noA'): a("s_endpgm")
        a.vm_reset()
        a.c("24 workgroups per group of 4 heads: 8 each own a fixed eighth of a home head, then all share head 4g+1 (s52 home, s96 shared, s97 slot)")
        a(f"s_sub_u32 s54, s2, 64\ns_mul_hi_u32 s96, s54, {M24}\ns_mul_i32 s56, s96, 24\ns_sub_u32 s97, s54, s56")
        a.c("speed only: every pool gets the same mix of workgroup positions and wave slots")
        if self.o.get('gmix', 0): a("s_add_u32 s96, s96, s97\ns_and_b32 s96, s96, 7")
        if self.o.get('wmix', 1): a(f"s_lshr_b32 s55, s97, 3\ns_add_u32 {sW}, {sW}, s97\ns_add_u32 {sW}, {sW}, s55\ns_and_b32 {sW}, {sW}, 3")
        if self.stamps: a("s_mul_i32 s2, s96, 24\ns_add_u32 s2, s2, s97\ns_add_u32 s2, s2, 64")
        self.shared_sel("s56", "s96")
        a(f"s_lshr_b32 s55, s97, 3\ns_and_b32 {sJ}, s97, 7\ns_lshl_b32 s96, s96, 2\ns_add_u32 s55, s55, s56\ns_add_u32 s55, s55, 1\ns_and_b32 s55, s55, 3")
        a(f"s_add_u32 {sH}, s96, s55\ns_add_u32 s96, s96, s56")
        a.c("s58 next static offset, s59 static end, s61 atomic threshold, s99 rotation of the shared pool, s100 base of the static part")
        sat = self.o.get('sat')
        if sat:
            self.scatter("s100", sJ, self.TB[4:7], "s55")
            a(f"s_lshl_b32 s55, {sW}, 25\ns_or_b32 s100, s100, s55\ns_lshl_b32 s55, {sH}, 20\ns_or_b32 s100, s100, s55")
            a(f"s_lshl_b32 s58, {sH}, 2\ns_add_u32 s58, s58, {sW}\ns_mul_i32 s58, s58, {self.o.get('rot', 5)}")
            self.scatter("s61", "s58", self.NB, "s55")
            a(f"s_mov_b32 s58, {(NX + R) * STEP}\ns_mov_b32 s59, {ST*STEP}")
            a(f"s_and_b32 s99, s96, 28\ns_add_u32 s99, s99, {sW}\ns_mul_i32 s99, s99, {self.o.get('rotd', 37)}")
        else:
            a(f"s_lshl_b32 s100, {sW}, 25\ns_lshl_b32 s55, {sH}, 20\ns_add_u32 s100, s100, s55\ns_lshl_b32 s55, {sJ}, {12 if il else 17}\ns_add_u32 s100, s100, s55")
            if il: a(f"s_lshl_b32 s58, {sH}, 2\ns_add_u32 s58, s58, {sW}\ns_mul_i32 s58, s58, {self.o.get('rot', 5)*STEP}")
            else: a(f"s_lshl_b32 s58, s54, 2\ns_add_u32 s58, s58, {sW}\ns_mul_i32 s58, s58, {self.o.get('rot', 5)*STEP}")
            a(f"s_add_u32 s59, s58, {ST*STEP}\ns_sub_u32 s61, s59, {0 if self.o.get('sat') else R*STEP}")
            a(f"s_and_b32 s99, s96, 28\ns_add_u32 s99, s99, {sW}\ns_mul_i32 s99, s99, {self.o.get('rotd', 37)*4096}")
        a(f"s_mov_b32 s63, {sJ}")
        if not self.o.get('nopf'): self.code_prefetch("L_roleA", "L_roleA_end", 1, junk=56)
        if sat:
            g0, g1, i0, i1 = self.TB[:4]
            a(f"s_mov_b32 s53, {OOB_WS}\nv_cmp_eq_u32 vcc, 0, v1\nv_lshlrev_b32 v0, 4, v3\nv_and_b32 v5, 1, v4\nv_lshl_add_u32 v0, v5, {g0}, v0\nv_lshrrev_b32 v5, 1, v4\nv_lshl_add_u32 v0, v5, {g1}, v0")
            a(f"v_add_u32 v18, {1 << i0}, v0\nv_add_u32 v48, {1 << i1}, v0\nv_add_u32 v49, {(1 << i0) + (1 << i1)}, v0")
        else: a(f"s_mov_b32 s53, {OOB_WS}\nv_mov_b32 v18, s53\nv_cmp_eq_u32 vcc, 0, v1\nv_cndmask_b32 v18, v18, v1, vcc")
        if self.o.get('st0'): self.stamp(13)
        a("s_waitcnt lgkmcnt(0)")
        if self.o.get('st0'): self.stamp(14)
        self.srd(SRD_A, P_K, 0x8000000); self.srd(SRD_B, P_V, 0x8000000); self.srd(SRD_WS, P_WS, 0x20000000)
        SM = 0xf8000 if il else 0x1f000
        if sat: SM = sum(1 << b for b in self.NB)
        if self.o.get('tlog'): a.c("tlog"); a("s_mov_b32 m0, 0\nv_mov_b32 v31, 0\ns_memrealtime s[86:87]")
        marks = []
        def T(t, ring):
            while a.vm - a.vm_done + 9 > 63:
                a.wait_for([m for m in marks if m > a.vm_done][0])
            pw = self.o.get('pw', 0)
            if pw and len(marks) >= pw: a.wait_for(marks[-pw] - self.o.get('pwk', 0))
            if ring and not self.o.get('noat') and not self.o.get('sat'): a(f"buffer_atomic_add v{48+t}, v18, {self.S(SRD_WS)}, s53 offen sc0")
            if sat: a(f"s_or_b32 s60, s61, s100\ns_or_b32 s61, s61, {~SM & 0xffffffff:#x}\ns_add_u32 s61, s61, 1\ns_and_b32 s61, s61, {SM:#x}")
            else: a(f"s_and_b32 s60, s58, {SM}\ns_or_b32 s60, s60, s100\ns_add_u32 s58, s58, {STEP}")
            self.a_loads(t, 'KV')
            self.tlog()
            marks.append(a.mark())
        order = [(R + i, False) for i in range(NX)] + [(i, True) for i in range(R)]
        FP, GP = self.o.get('fpos', 6), self.o.get('gpos', 9)
        for k, (t, ring) in enumerate(order[:FP]):
            T(t, ring)
            if self.o.get('st0') and k == 0:
                self.stamp(15)
                if self.o['st0'] == 2: a("s_waitcnt vmcnt(7)"); self.stamp(12); a("s_waitcnt vmcnt(0)"); self.stamp(11); continue
            if self.o.get('st0') == 2: continue
            if k in (1, 3) and not self.o.get('tlog'): self.stamp(11 + k // 2)
        self.stamp(8)
        sig1 = self.o.get('sig1')
        if sig1:
            a.c("cached read of a monotonic counter, off the vector path; the slow path re-reads coherently")
            if self.EPI: self.epi_head()
            a(f"v_mov_b32 v58, 0\ns_load_dword s18, s[{P_DBG}:{P_DBG+1}], 0")
        else:
            a(f"s_lshl_b32 s54, {sH}, 2\ns_lshl_b32 s55, s96, 2\nv_mov_b32 v58, s54\nv_mov_b32 v57, s55\nv_cndmask_b32 v58, v58, v57, vcc")
            a.c("cached reads of monotonic flags, off the vector path; the slow path re-reads coherently")
            if self.EPI:
                self.epi_head()
                a(f"s_lshl_b32 s27, s26, 2\nv_writelane_b32 v58, s27, 1\ns_load_dword s17, s[{P_DBG}:{P_DBG+1}], s27")
            a(f"s_load_dword s18, s[{P_DBG}:{P_DBG+1}], s54\ns_load_dword s19, s[{P_DBG}:{P_DBG+1}], s55")
        for t, ring in order[FP:GP]: T(t, ring)
        a.c("setup while waiting: PV masks v[8:11], acc v[12:15], m v16, l v17, q address v59, store address v3")
        self.pv_masks()
        if self.EPI == 2: self.dyn_setup()
        elif self.EPI: self.epi_setup()
        self.a_reset()
        if self.QS == 1: a("v_lshlrev_b32 v59, 4, v3\nv_and_b32 v5, 1, v4")
        else:
            a("v_lshrrev_b32 v5, 1, v4\nv_lshlrev_b32 v59, 5, v3\nv_lshl_add_u32 v59, v5, 4, v59")
            a("v_and_b32 v5, 1, v4\nv_lshl_add_u32 v59, v5, 11, v59")
        a.c("final store: row 0 home O, row 1 shared O, lane 32 / 48 their (m, l); pool (h, b) at 8 KB stride: slots of 256 B, (m, l) from 6144")
        a(f"s_lshl_b32 s54, {sH}, 2\ns_add_u32 s54, s54, {sW}\ns_lshl_b32 s54, s54, 13\ns_lshl_b32 s55, s96, 2\ns_add_u32 s55, s55, {sW}\ns_lshl_b32 s55, s55, 13")
        a("v_cmp_eq_u32 vcc, 1, v5\nv_mov_b32 v6, s54\nv_mov_b32 v7, s55\nv_cndmask_b32 v6, v6, v7, vcc")
        a("v_mov_b32 v20, s63\nv_mov_b32 v7, s97\nv_cndmask_b32 v7, v20, v7, vcc")
        a("v_lshl_add_u32 v20, v7, 4, v3\nv_lshl_add_u32 v20, v20, 4, v6")
        a("v_lshl_add_u32 v21, v7, 4, v6\nv_add_u32 v21, 6144, v21\nv_mov_b32 v7, s53\nv_cmp_eq_u32 vcc, 0, v3\nv_cndmask_b32 v21, v7, v21, vcc")
        a("v_cmp_gt_u32 vcc, 32, v1\nv_cndmask_b32 v3, v21, v20, vcc")
        a.c("s[8:9] / s[10:11]: (mask, base) of the static / shared tiles; s12 q2 address, s13 second slot, s14 next event, s15 switch point")
        a(f"s_mov_b32 s8, {SM}\ns_mov_b32 s9, s100\ns_mov_b32 s10, 0xff000\ns_lshl_b32 s11, {sW}, 25\ns_lshl_b32 s54, s96, 20\ns_add_u32 s11, s11, s54")
        a(("s_and_b32 s57, s96, 28" if self.o.get('cdn') else "s_lshl_b32 s57, s96, 2") + f"\ns_add_u32 s57, s57, {sW}\ns_mul_i32 s57, s57, {self.CST}\ns_add_u32 s57, s57, {self.CTR}")
        qb, qh = (8, 10) if self.QS == 1 else (9, 12)
        a(f"s_lshl_b32 s54, {sW}, {qb}\ns_add_u32 s54, s54, {WS_QA}\ns_lshl_b32 s56, {sH}, {qh}\ns_add_u32 s56, s56, s54\ns_lshl_b32 s12, s96, {qh}\ns_add_u32 s12, s12, s54")
        a("s_mov_b32 s13, 0")
        if self.o.get('noat'): a("s_mov_b32 s16, s97")
        a(f"s_add_u32 s15, s59, {R*STEP}\ns_sub_u32 s14, s15, {self.o.get('evl', 2)*R*STEP}")
        a(f"s_mov_b32 s96, {f2u(SCALE)}\ns_mov_b32 s97, {f2u(LOG2E)}\ns_mov_b32 s98, 0xffff0000")
        a(f"s_mov_b32 s62, {R}\ns_mov_b32 s101, " + str(self.o.get("aspin", self.o.get("spin", 100000))))
        self.stamp(9)
        a("s_waitcnt lgkmcnt(0)")
        self.stamp(1)
        if self.EPI and not sig1: a("s_min_u32 s18, s18, s17")
        if sig1: a("s_cmp_lt_u32 s18, 64\ns_cbranch_scc1 L_aflag")
        elif not self.o.get('noflag'): a("s_min_u32 s18, s18, s19\ns_cmp_lt_u32 s18, 2\ns_cbranch_scc1 L_aflag")
        a.label("L_aflag_ok")
        if sat: a(f"s_mov_b32 s18, {ST - NX - R}\ns_mov_b64 s[6:7], s[8:9]\ns_mov_b32 s63, 0")
        if self.EARLY: a("s_mov_b32 s19, 256")
        elif self.DRAIN and self.EPI != 2: a(f"s_cmp_eq_u32 {sW}, 3\ns_cselect_b32 s19, -1, {256 if sat else 0x100000}")
        if not self.o.get('noq'): a(f"buffer_load_dwordx4 v[60:63], v59, {self.S(SRD_WS)}, s56 offen sc1")
        mG = a.mark()
        for t, ring in order[GP:]: T(t, ring)
        self.stamp(10)
        a.wait_for(mG)
        self.stamp(2)
        if self.o.get('noq'):
            for r in range(4): a(f"v_mov_b32 v{60+r}, 0")
        self.a_take_q(1, "s56")
        a("s_mov_b32 s56, 1")
        self.stamp(3)
        a.vm_count = False
        ext = [[] for _ in range(R)]
        for i in range(NX): ext[i * R // NX].append(R + i)
        last_ext = max([s for s in range(R) if ext[s]] + [-1])
        XS = self.o.get('xs', 0)
        a.label("L_aloop")
        for s in range(R):
            self.a_body(s, True)
            if self.EPI != 2: a("s_cmp_eq_u32 s62, 0\ns_cbranch_scc1 L_adone")
            if ext[s]:
                a(f"s_cmp_lg_u32 s56, 0\ns_cbranch_scc1 L_aext{s}")
                a.label(f"L_aback{s}")
        a("s_cmp_lg_u32 s58, s14\ns_cbranch_scc1 L_aloop")
        a.c("events: fetch q of the shared head; later publish the home partial and switch over")
        a("s_cmp_eq_u32 s14, s15\ns_cbranch_scc1 L_aswitch")
        if not self.o.get('noq'): a(f"buffer_load_dwordx4 v[60:63], v59, {self.S(SRD_WS)}, s12 offen sc1")
        if self.o.get('wt'): a(f"s_mov_b64 exec, {self.o['wt']}\nbuffer_load_dword v31, v19, {self.S(SRD_C)}, s24 offen nt\ns_mov_b64 exec, -1")
        a("s_mov_b32 s14, s15")
        if self.EARLY:
            a(f"s_cmp_eq_u32 {sW}, 3\ns_cbranch_scc1 L_aloop")
            self.epi_loads()
        a("s_branch L_aloop")
        a.label("L_aswitch")
        if self.EARLY: self.epi_tr(None, 0)
        else: a.settle()
        self.a_pack(52, 50)
        self.a_reset()
        a("s_mov_b32 s13, 1\ns_cmp_eq_u32 s62, 0\ns_cbranch_scc1 L_adone")
        self.a_take_q(2, "s12")
        self.stamp(7)
        if self.DRAIN:
            a("s_cmp_lg_u32 s62, 3\ns_cbranch_scc1 L_aloop\ns_branch L_alast0")
            a.label("L_adrain1")
            self.a_body(1, False, 1)
            a("s_mov_b32 s62, 3\ns_cmp_eq_u32 s13, 0\ns_cbranch_scc1 L_aswitch")
            a.label("L_alast0")
            self.a_body(0, False, 2)
            a("s_nop 3\ns_branch L_adone2")
            a.label("L_adrain0")
            self.a_body(0, False, 1)
            self.a_body(1, False, 2)
            a("s_mov_b32 s62, 0")
        else: a("s_branch L_aloop")
        def blk_ext():
            if XS:
                grp = [list(range(R + i, R + min(i + XS, NX))) for i in range(0, NX, XS)]
                for k, g in enumerate(grp):
                    a.label(f"L_aext{k}")
                    if k + R < len(grp): a(f"s_cmp_lg_u32 s56, {k+1}\ns_cbranch_scc1 L_aext{k+R}")
                    for t in g: self.a_body(t, False)
                    a(f"s_mov_b32 s56, {k+2 if k + 1 < len(grp) else 0}\ns_branch L_aback{k%R}")
            for s in range(R):
                if not ext[s] or XS: continue
                a.label(f"L_aext{s}")
                for t in ext[s]: self.a_body(t, False)
                if s == last_ext: a("s_mov_b32 s56, 0")
                a(f"s_branch L_aback{s}")
            a.c("slow path: flags not there yet")
            a.label("L_aflag")
            a(f"s_sleep 2\nglobal_load_dword v57, v58, s[{P_DBG}:{P_DBG+1}] sc1\ns_waitcnt vmcnt(0)")
            a(f"v_cmp_gt_u32 vcc, {64 if sig1 else 2}, v57\ns_cbranch_vccz L_aflag_ok\ns_sub_u32 s101, s101, 1\ns_cbranch_scc0 L_aflag\ns_mov_b32 s101, 0\ns_branch L_aflag_ok")
        def blk_done():
            a.label("L_adone")
            a("s_cmp_eq_u32 s13, 0\ns_cbranch_scc1 L_aswitch")
            a.label("L_adone2")
            self.stamp(4)
            self.a_pack(54, 16)
            a("v_cmp_gt_u32 vcc, 48, v1\nv_cndmask_b32 v16, v16, v50, vcc\nv_cndmask_b32 v17, v17, v51, vcc")
            a("v_permlane16_swap_b32 v52, v54\nv_permlane16_swap_b32 v53, v55\nv_cmp_gt_u32 vcc, 32, v1")
            for r in range(4): a(f"v_cndmask_b32 v{52+r}, v{16+(r&1)}, v{52+r}, vcc")
            for r in range(4): a(f"v_min_u32 v{52+r}, -2, v{52+r}")
            a(f"s_mov_b32 s54, {WS_APART}\nbuffer_store_dwordx4 v[52:55], v3, {self.S(SRD_WS)}, s54 offen sc1")
            if self.stamps: a(f"s_sub_u32 s76, s58, s59\ns_lshr_b32 s76, s76, {15 if il else 12}\ns_mul_i32 s76, s76, 10\ns_add_u32 s76, s76, s64\ns_mov_b32 s77, s65")
            self.stamp(5)
            if self.o.get('aexit'): a("s_sleep 127\ns_sleep 127"); self.write_stamps(); a("s_endpgm")
            if self.o.get('abar'): a("s_barrier")
            if self.EPI == 2: return self.dyn_epilogue()
            if self.EPI: return self.epilogue()
            self.write_stamps()
            a("s_endpgm")
        if self.o.get('dn', 1): blk_done(); blk_ext()
        else: blk_ext(); blk_done()
        a.label("L_roleA_end")
        a.vm_count = True

    def signal(self, off):
        a = self.a
        if self.o.get('nosig'): return
        if self.o.get('sig1'):
            lab = a.newlabel('nosig')
            a(f"s_cmp_lg_u32 {sW}, 0\ns_cbranch_scc1 {lab}\ns_mov_b32 s97, 1\ns_atomic_add s97, s[{P_DBG}:{P_DBG+1}], 0 glc\n{lab}:")
            return
        lab = a.newlabel('nosig')
        a(f"s_cmp_lg_u32 {sW}, 0\ns_cbranch_scc1 {lab}")
        if off is None: a(f"s_lshl_b32 s54, {sH}, 2\nv_mov_b32 v5, s54")
        else: a(f"v_mov_b32 v5, {off}")
        a("v_mov_b32 v6, 1\ns_mov_b64 exec, 1")
        a.vm_count = False
        a(f"global_atomic_add v5, v6, s[{P_DBG}:{P_DBG+1}]")
        a.vm_count = True
        a("s_mov_b64 exec, -1")
        a.label(lab)

    def wait_counter(self, voff_setup, target):
        a = self.a
        lab, done = a.newlabel('poll'), a.newlabel('polled')
        a(f"s_cmp_lg_u32 {sW}, 0\ns_cbranch_scc1 {done}")
        a(voff_setup)
        a.vm_count = False
        a.label(lab)
        a(f"global_load_dword v6, v5, s[{P_DBG}:{P_DBG+1}] sc1")
        a("s_waitcnt vmcnt(0)")
        a(f"v_cmp_le_u32 vcc, {target}, v6")
        a(f"s_cbranch_vccnz {done}\ns_sleep 2\ns_sub_u32 s101, s101, 1\ns_cbranch_scc0 {lab}\ns_mov_b32 s101, 0")
        a.label(done)
        a.vm_count = True
        a("s_barrier")

    def flags_issue(self, va, vd):
        if self.o.get('sig1'): return self.a(f"v_mov_b32 v{va}, 0\nglobal_load_dword v{vd}, v{va}, s[{P_DBG}:{P_DBG+1}] sc1")
        self.a(f"v_and_b32 v{va}, 31, v1\nv_lshlrev_b32 v{va}, 2, v{va}\nglobal_load_dword v{vd}, v{va}, s[{P_DBG}:{P_DBG+1}] sc1")
    def flags_check(self, va, vd):
        a = self.a
        lab, done = a.newlabel('flags'), a.newlabel('flagsok')
        a.label(lab)
        a(f"v_cmp_gt_u32 vcc, {64 if self.o.get('sig1') else 2}, v{vd}\ns_cbranch_vccz {done}\ns_sleep 2")
        a(f"global_load_dword v{vd}, v{va}, s[{P_DBG}:{P_DBG+1}] sc1\ns_waitcnt vmcnt(0)")
        a(f"s_sub_u32 s101, s101, 1\ns_cbranch_scc0 {lab}\ns_mov_b32 s101, 0")
        a.label(done)
    def masked_poll(self, loads, tmp, depth=1, lazy=0, pre=False, nap=0):
        a = self.a
        lab, ok = a.newlabel('mpoll'), a.newlabel('mpollok')
        n = len(loads)
        if pre: a(f"s_branch {lab}_c")
        else:
            for j in range(n): a(f"s_mov_b64 s[{4+2*j}:{5+2*j}], -1")
        a.label(lab)
        for j, (t, r) in enumerate(loads): a(f"s_mov_b64 exec, s[{4+2*j}:{5+2*j}]\n" + t)
        a(f"s_mov_b64 exec, -1\ns_waitcnt vmcnt({n*(depth-1)})")
        if pre: a.label(lab + "_c")
        for j, (t, r) in enumerate(loads): a(f"v_max3_u32 v{tmp+j}, v{r}, v{r+1}, v{r+2}")
        for j, (t, r) in enumerate(loads): a(f"v_max_u32 v{tmp+j}, v{tmp+j}, v{r+3}")
        for j, (t, r) in enumerate(loads): a(f"v_cmp_eq_u32 s[{4+2*j}:{5+2*j}], -1, v{tmp+j}")
        a("s_or_b64 vcc, s[4:5], s[6:7]")
        for j in range(2, n): a(f"s_or_b64 vcc, vcc, s[{4+2*j}:{5+2*j}]")
        a(f"s_cbranch_scc0 {ok}")
        if lazy:
            a("s_and_b64 vcc, s[4:5], s[6:7]")
            for j in range(2, n): a(f"s_and_b64 vcc, vcc, s[{4+2*j}:{5+2*j}]")
            a(f"s_cmp_eq_u64 vcc, -1\ns_cbranch_scc0 {lab}_b\ns_sleep {lazy}\n{lab}_b:")
        if nap: a(f"s_sleep {nap}")
        a(f"s_sub_u32 s101, s101, 1\ns_cbranch_scc0 {lab}\ns_mov_b32 s101, 0")
        a.label(ok)
    def umax(self, dst, regs, t2):
        a = self.a
        h = len(regs) // 2
        chains = [(dst, list(regs[:h])), (t2, list(regs[h:]))]
        for d, r in chains:
            a(f"v_max3_u32 v{d}, v{r[0]}, v{r[1]}, v{r[2]}"); del r[:3]
        while any(len(r) >= 2 for _, r in chains):
            for d, r in chains:
                if len(r) >= 2: a(f"v_max3_u32 v{d}, v{d}, v{r[0]}, v{r[1]}"); del r[:2]
        left = chains[0][1] + chains[1][1]
        if len(left) == 2: a(f"v_max3_u32 v{dst}, v{dst}, v{left[0]}, v{left[1]}"); left = []
        if left: a(f"v_max3_u32 v{dst}, v{dst}, v{t2}, v{left[0]}")
        else: a(f"v_max_u32 v{dst}, v{dst}, v{t2}")
    def qabs_store(self, r0):
        a = self.a
        a.c("q_abs store: lane (n,G): batch n>>2, c = 128w + 32(n&3) + 8G..+8")
        a("v_lshrrev_b32 v5, 2, v3\nv_lshlrev_b32 v5, 15, v5\nv_lshl_add_u32 v5, v4, 4, v5\nv_and_b32 v6, 3, v3\nv_lshl_add_u32 v5, v6, 6, v5")
        a(f"s_lshl_b32 s54, {sH}, 10\ns_lshl_b32 s55, {sW}, 8\ns_add_u32 s54, s54, s55\ns_add_u32 s54, s54, {WS_QABS}")
        a(f"buffer_store_dwordx4 v[{r0}:{r0+3}], v5, {self.S(SRD_WS)}, s54 offen sc1")
    def part_addr(self, n):
        a = self.a
        a(f"s_lshl_b32 s58, {sH}, 2\ns_add_u32 s58, s58, {sW}\ns_lshl_b32 s58, s58, 13\ns_add_u32 s58, s58, {WS_APART}\ns_add_u32 s59, s58, 4096")
        a(f"v_min_u32 v6, {n//4-1}, v3\nv_lshl_add_u32 v6, v6, 2, v4\nv_lshlrev_b32 v6, 4, v6")
    def part_io(self, k): return f"v2, {self.S(SRD_WS)}, s{58 + k // 4} offen offset:{1024*(k&3)} sc1"
    def combine(self, n):
        a = self.a
        D = "row_mask:0xf bank_mask:0xf"
        K = n // 4
        self.part_addr(n)
        light, heavy = a.newlabel('light'), a.newlabel('heavy')
        a.label(light)
        a(f"buffer_load_dword v236, v6, {self.S(SRD_WS)}, s59 offen offset:2048 sc1")
        a(f"s_waitcnt vmcnt(0)\nv_cmp_ne_u32 vcc, -1, v236\ns_bcnt1_i32_b64 s54, vcc\ns_cmp_ge_u32 s54, {self.o.get('lt', 24)}")
        a(f"s_cbranch_scc1 {heavy}\ns_sleep 2\ns_sub_u32 s101, s101, 1\ns_cbranch_scc0 {light}\ns_mov_b32 s101, 0")
        a.label(heavy)
        loads = [(f"buffer_load_dwordx4 v[232:235], v6, {self.S(SRD_WS)}, s59 offen offset:2048 sc1", 232)]
        loads += [(f"buffer_load_dwordx4 v[{16+4*k}:{19+4*k}], " + self.part_io(k), 16 + 4 * k) for k in range(K)]
        self.masked_poll(loads, 236)
        self.stamp(7)
        def allred(op, r):
            o = [f"{op}_dpp v{r}, v{r}, v{r} row_ror:{sh} {D}" for sh in (1, 2, 4, 8)]
            for p in (16, 32): o += [f"v_mov_b32 v236, v{r}", f"v_permlane{p}_swap_b32 v{r}, v236", f"{op} v{r}, v{r}, v236"]
            return o
        co = [f"v_cmp_gt_u32 vcc, {K}, v3", "v_cndmask_b32 v233, 0, v233, vcc"]
        co += allred("v_max_f32", 234)
        co += ["v_sub_f32 v232, v232, v234", "v_mul_f32 v232, s97, v232", "v_exp_f32 v232, v232", "v_mul_f32 v233, v233, v232"]
        un = []
        for k in range(K):
            for q in range(4): un += [f"v_lshlrev_b32 v{40+4*k+q}, 16, v{16+4*k+q}", f"v_and_b32 v{16+4*k+q}, s98, v{16+4*k+q}"]
        for t in mix(un, co, 3 if K > 2 else 1): a(t)
        fm = []
        for k in range(K):
            op = "v_mul_f32_dpp" if k == 0 else "v_fmac_f32_dpp"
            for q in range(4):
                fm += [f"{op} v{224+2*q}, v232, v{40+4*k+q} row_newbcast:{k} {D}", f"{op} v{225+2*q}, v232, v{16+4*k+q} row_newbcast:{k} {D}"]
        for t in mix(fm, allred("v_add_f32", 233) + ["v_rcp_f32 v233, v233"], 3 if K > 2 else 1): a(t)
        for e in range(4): a(f"v_permlane32_swap_b32 v{224+e}, v{228+e}")
        for e in range(4): a(f"v_add_f32 v{224+e}, v{224+e}, v{228+e}")
        for e in range(2): a(f"v_permlane16_swap_b32 v{224+e}, v{226+e}")
        for e in range(2): a(f"v_add_f32 v{224+e}, v{224+e}, v{226+e}")
        for e in range(2): a(f"v_mul_f32 v{224+e}, v{224+e}, v233")

    def pv_masks(self):
        a = self.a
        a("v_and_b32 v5, 1, v3\nv_cmp_eq_u32 vcc, 1, v5\nv_mov_b32 v5, 0xffff\nv_mov_b32 v6, 0xffff0000\nv_cndmask_b32 v5, v5, v6, vcc")
        a("v_lshrrev_b32 v6, 1, v3")
        for q in range(4):
            a(f"v_cmp_eq_u32 vcc, {q}, v6\nv_cndmask_b32 v{8+q}, 0, v5, vcc")
    def combine2(self, n, epi=False):
        a = self.a
        D = "row_mask:0xf bank_mask:0xf"
        K = n // 4
        P = 2 if K == 2 else 8
        light, heavy = a.newlabel('light'), a.newlabel('heavy')
        ml = f"v30, {self.S(SRD_WS)}, s58 offen sc1" if epi else f"v6, {self.S(SRD_WS)}, s59 offen offset:2048 sc1"
        loads = [(f"buffer_load_dwordx4 v[40:43], " + ml, 40)]
        db = 192 if epi else 16
        loads += [(f"buffer_load_dwordx4 v[{db+4*k}:{db+3+4*k}], " + self.part_io(k), db + 4 * k) for k in range(K)]
        if epi:
            for t, r in loads: a(t)
            self.epi_rest()
            a(f"s_lshl_b32 s54, {sW}, 9\nv_lshl_add_u32 v5, v3, 4, s54\nv_and_b32 v6, 1, v4\nv_lshl_add_u32 v5, v6, 3, v5\nv_lshrrev_b32 v6, 1, v4\nv_lshl_add_u32 v5, v6, 8, v5")
            a("v_lshrrev_b32 v7, 2, v3\nv_lshlrev_b32 v7, 9, v7\nv_lshl_add_u32 v7, v4, 4, v7\nv_and_b32 v6, 1, v1\nv_lshl_add_u32 v7, v6, 6, v7")
            a(f"v_and_b32 v6, {P-1}, v3\nv_cmp_gt_u32 s[20:21], {K}, v6")
            self.epi_tr(0, K + 1)
            self.stamp(13)
            a("s_waitcnt vmcnt(0)")
        else: a(f"v_and_b32 v6, {P-1}, v3\nv_cmp_gt_u32 s[20:21], {K}, v6\nv_min_u32 v6, {K-1}, v6\nv_lshl_add_u32 v6, v6, 2, v4\nv_lshlrev_b32 v6, 4, v6")
        if not epi:
            a.label(light)
            a(f"buffer_load_dword v236, " + ml)
            a(f"s_waitcnt vmcnt(0)\nv_cmp_ne_u32 vcc, -1, v236\ns_bcnt1_i32_b64 s54, vcc\ns_cmp_ge_u32 s54, {self.o.get('lt', 24)}")
            a(f"s_cbranch_scc1 {heavy}\ns_sleep 2\ns_sub_u32 s101, s101, 1\ns_cbranch_scc0 {light}\ns_mov_b32 s101, 0")
            a.label(heavy)
        self.masked_poll(loads, 236, self.o.get('cd', 2), pre=epi, nap=self.o.get('nap', 0))
        self.stamp(14 if epi else 7)
        def allred(op, r, src, t):
            o = []
            for sh in ((1,) if P == 2 else (1, 2, 4)):
                o.append(f"{op}_dpp v{r}, v{src}, v{src} row_ror:{sh} {D}"); src = r
            for p in (16, 32): o += [f"v_mov_b32 v{t}, v{r}", f"v_permlane{p}_swap_b32 v{r}, v{t}", f"{op} v{r}, v{r}, v{t}"]
            return o
        for t in mix(allred("v_max_f32", 44, 40, 45), ["v_cndmask_b32 v47, 0, v41, s[20:21]"], 1, 1): a(t)
        a("v_sub_f32 v45, v40, v44\nv_mul_f32 v45, s97, v45\nv_exp_f32 v45, v45\nv_cvt_pk_bf16_f32 v46, v45, v45\nv_and_b32 v45, s98, v46\nv_mul_f32 v47, v47, v45")
        fm = []
        for k in range(K):
            tb = 232 + 4 * k
            fm += [f"v_and_b32_dpp v{tb+q}, v46, v{8+q} row_newbcast:{k} {D}" for q in range(4)]
            if k: fm.append(f"v_mfma_f32_16x16x32_bf16 v[228:231], v[{tb-4}:{tb-1}], v[{db-4+4*k}:{db-1+4*k}], " + ("0" if k == 1 else "v[228:231]"))
        red = allred("v_add_f32", 47, 47, 45) + ["v_rcp_f32 v47, v47"]
        last = f"v_mfma_f32_16x16x32_bf16 v[228:231], v[{228+4*K}:{231+4*K}], v[{db-4+4*K}:{db-1+4*K}], v[228:231]"
        if K > 2:
            for t in mix(fm, red[:-3], 4, 2) + red[-3:-1] + [last] + red[-1:]: a(t)
        else:
            for t in mix(fm, red[:3], 3, 2) + [red[3], last] + red[4:]: a(t)
        for e in range(4): a(f"v_mul_f32 v{228+e}, v{228+e}, v47")
        a("v_cvt_pk_bf16_f32 v224, v228, v229\nv_cvt_pk_bf16_f32 v225, v230, v231")
    def oproj2(self, va, vx, so, xa=None):
        a = self.a
        mf = lambda d, kk, b, f='v': f"v_mfma_f32_16x16x32_bf16 v[{d}:{d+3}], v[{48+4*kk}:{51+4*kk}], {f}[{b}:{b+3}], " + ("0" if kk == 0 else f"v[{d}:{d+3}]")
        for kk in range(4):
            a(f"s_waitcnt lgkmcnt({3-kk})")
            for j in range(4): a(mf(224 + 4 * j, kk, 64 + 32 * kk + 4 * j))
            for j in range(2): a(mf(8 + 4 * j, kk, 192 + 8 * kk + 4 * j) if xa is None else mf(8 + 4 * j, kk, xa + 8 * kk + 4 * j, 'a'))
        g2 = [mf(224 + 4 * j, kk, 64 + 32 * kk + 4 * j) for kk in range(4) for j in range(4, 8)]
        side = [f"v_min_u32 v{224+j}, -2, v{224+4*j}" for j in range(4)] + [f"buffer_store_dwordx4 v[224:227], v{va}, {self.S(SRD_WS)}, s{so} offen sc1"]
        side += [f"v_min_u32 v{8+j}, -2, v{8+4*j}" for j in range(2)] + [f"buffer_store_dwordx2 v[8:9], v{vx}, {self.S(SRD_WS)}, s{so+2} offen sc1"]
        for t in mix(g2, side, 1, 4): a(t)
        for j in range(4): a(f"v_min_u32 v{240+j}, -2, v{240+4*j}")
        a(f"buffer_store_dwordx4 v[240:243], v{va}, {self.S(SRD_WS)}, s{so+1} offen sc1")
    def final_reduce2(self, part, lazy):
        a = self.a
        skip = a.newlabel('nored')
        a(f"s_lshl_b32 s54, {sW}, 5\ns_add_u32 s54, s54, s53")
        if part == 0 and not self.EPI: a("s_sub_u32 s54, 127, s54")
        a(f"s_cmp_ge_u32 s54, 72\ns_cbranch_scc1 {skip}")
        if part == 0: a("s_waitcnt vmcnt(0)")
        for r in range(48, 64): a(f"v_mov_b32 v{r}, -1")
        a(f"s_lshl_b32 s55, s54, 12\ns_add_u32 s55, s55, {WS_Y + part * WS_YPART}")
        if self.EPI:
            a.c("output address: tau = 18 b + k -> columns 32k..; lane (r, p) ends up with element r of piece p")
            a(f"s_mul_hi_u32 s56, s54, {M18}\ns_add_u32 s56, s56, {part}\ns_mul_i32 s56, s56, 1152\ns_lshl_b32 s57, s54, 6\ns_add_u32 s56, s56, s57")
            a("v_lshlrev_b32 v5, 3, v3\nv_lshl_add_u32 v5, v4, 1, v5\nv_mov_b32 v6, 0x4000\nv_cmp_gt_u32 vcc, 8, v3\nv_cndmask_b32 v5, v6, v5, vcc")
        else:
            a.c("output address: b = tau/18, k = tau%18; lane (r, p) ends up with element r of piece p")
            a(f"s_mul_hi_u32 s56, s54, {M18}\ns_mul_i32 s57, s56, 18\ns_sub_u32 s57, s54, s57")
            a(f"s_mul_i32 s56, s56, 2304\ns_add_u32 s56, s56, {1152*part}")
            a("s_lshr_b32 s58, s57, 1\ns_lshl_b32 s58, s58, 7\ns_and_b32 s59, s57, 1")
            a("s_cmp_lt_u32 s57, 16\ns_cselect_b32 s60, 3, 6\ns_cselect_b32 s61, 4, 3")
            a("s_lshl_b32 s59, s59, s60\ns_add_u32 s56, s56, s58\ns_add_u32 s56, s56, s59")
            a("v_lshlrev_b32 v5, s61, v3\nv_lshl_add_u32 v5, v4, 1, v5\nv_mov_b32 v6, 0x4000\nv_cmp_gt_u32 vcc, 8, v3\nv_cndmask_b32 v5, v6, v5, vcc")
        self.masked_poll([(f"buffer_load_dwordx4 v[{48+4*i}:{51+4*i}], v2, {self.S(SRD_WS)}, s55 offen offset:{1024*i} sc1", 48 + 4 * i) for i in range(4)], 32, self.o.get('fr', 2), lazy)
        for r in (0, 2, 1, 3): a(f"v_add_f32 v{16+r}, v{48+r}, v{52+r}\nv_add_f32 v{24+r}, v{56+r}, v{60+r}")
        for r in (0, 2, 1, 3): a(f"v_add_f32 v{16+r}, v{16+r}, v{24+r}")
        a("v_permlane32_swap_b32 v16, v18\nv_permlane32_swap_b32 v17, v19\nv_add_f32 v16, v16, v18\nv_add_f32 v17, v17, v19")
        a("v_permlane16_swap_b32 v16, v17\nv_add_f32 v16, v16, v17\nv_add_f32_dpp v16, v16, v16 row_ror:8 row_mask:0xf bank_mask:0xf")
        a(f"v_cvt_pk_bf16_f32 v16, v16, v16\nbuffer_store_short v16, v5, {self.S(SRD_D)}, s56 offen")
        a.label(skip)

    def y_addr(self):
        a = self.a
        sk = self.o.get('ysk', 0)
        a(f"v_mul_u32_u24 v7, {18*4096}, v4")
        a("v_lshrrev_b32 v5, 3, v3\nv_lshl_add_u32 v6, v5, 13, v7")
        if sk:
            a(f"s_lshl_b32 s54, {sW}, 1\ns_add_u32 s54, s54, {sH}\nv_mad_u32_u24 v5, v4, 9, v5\nv_add_u32 v5, s54, v5\nv_and_b32 v5, 31, v5\nv_lshl_add_u32 v6, v5, 7, v6")
        a("v_and_b32 v5, 7, v3\nv_lshl_add_u32 v6, v5, 4, v6")
        a(f"v_lshl_add_u32 v7, v3, 3, v7\nv_add_u32 v7, {16*4096}, v7")
        if sk:
            a(f"s_add_u32 s54, {sH}, 8\nv_mad_u32_u24 v5, v4, 9, s54\nv_and_b32 v5, 31, v5\nv_lshl_add_u32 v7, v5, 7, v7")
    def y_soff(self, part):
        a = self.a
        if self.o.get('ysk', 0): a(f"s_mov_b32 s56, {WS_Y + part * WS_YPART}")
        else: a(f"s_lshl_b32 s56, {sH}, 7\ns_add_u32 s56, s56, {WS_Y + part * WS_YPART}")
        a(f"s_lshl_b32 s54, {sW}, 14\ns_add_u32 s54, s54, s56\ns_add_u32 s55, s54, 4096")
        a(f"s_and_b32 s57, {sW}, 1\ns_lshl_b32 s57, s57, 12\ns_add_u32 s56, s56, s57")
    def y_store(self, r0, r1, rx):
        a = self.a
        a(f"buffer_store_dwordx4 v[{r0}:{r0+3}], v6, {self.S(SRD_WS)}, s54 offen sc1")
        a(f"buffer_store_dwordx4 v[{r1}:{r1+3}], v6, {self.S(SRD_WS)}, s55 offen sc1")
        a(f"buffer_store_dwordx2 v[{rx}:{rx+1}], v7, {self.S(SRD_WS)}, s56 offen sc1")

    def oproj_list(self, srd, f='v', va=80):
        main, extra = [], []
        for rb in range(4):
            for e in range(8):
                r = 96 + 32 * rb + 4 * e
                adv = {3: 4608, 7: 36864 - 4608}.get(e)
                main.append(f"buffer_load_dwordx4 {f}[{r}:{r+3}], v{va}, {self.S(srd)}, s99 offen offset:{1152*(e&3)} nt" + (f"\ns_add_u32 s99, s99, {adv}" if adv else ""))
                extra.append(f"buffer_load_dword {f}{224+8*rb+e}, v{va+1}, {self.S(srd)}, s100 offen offset:{1152*(e&3)} nt" + (f"\ns_add_u32 s100, s100, {adv}" if adv else ""))
        return main, extra
    def oproj_addr(self, va=80):
        a = self.a
        a(f"v_mul_u32_u24 v{va+1}, 9216, v4\nv_lshl_add_u32 v{va}, v3, 4, v{va+1}\nv_lshl_add_u32 v{va+1}, v3, 2, v{va+1}")
        a(f"s_mul_i32 s100, {sH}, 147456\ns_lshl_b32 s54, {sW}, 8\ns_add_u32 s99, s100, s54")
        a(f"s_and_b32 s54, {sW}, 1\ns_lshl_b32 s54, s54, 6\ns_add_u32 s100, s100, s54\ns_add_u32 s100, s100, 1024")
    def issue_capped(self, items, cap=40):
        a = self.a
        for t in items:
            if a.vm - a.vm_done + a.vm_slack >= 62: a(f"s_waitcnt vmcnt({cap})")
            a(t)
    def oproj_transpose(self):
        a = self.a
        a("s_mov_b32 s54, 0x05040100\ns_mov_b32 s55, 0x07060302")
        for rb in range(4):
            for j in range(8):
                for q in range(4):
                    lo, hi = 96 + 32 * rb + 4 * (2 * q) + (j >> 1), 96 + 32 * rb + 4 * (2 * q + 1) + (j >> 1)
                    a(f"v_perm_b32 v{64+32*rb+4*j+q}, v{hi}, v{lo}, s{54+(j&1)}")
        for rb in range(4):
            for j in range(2):
                for q in range(4):
                    a(f"v_perm_b32 v{192+8*rb+4*j+q}, v{224+8*rb+2*q+1}, v{224+8*rb+2*q}, s{54+j}")
    def tr_main(self, rb):
        for j in range(8):
            for q in range(4):
                lo, hi = 96 + 32 * rb + 4 * (2 * q) + (j >> 1), 96 + 32 * rb + 4 * (2 * q + 1) + (j >> 1)
                self.a(f"v_perm_b32 v{64+32*rb+4*j+q}, v{hi}, v{lo}, s{24+(j&1)}")
    def tr_extra(self, dst, tmp):
        a = self.a
        for rb in range(4):
            for j in range(2):
                for q in range(4):
                    a(f"v_perm_b32 v{tmp+8*rb+4*j+q}, v{224+8*rb+2*q+1}, v{224+8*rb+2*q}, s{24+j}")
        for r in range(32): a(f"v_accvgpr_write_b32 a{dst+r}, v{tmp+r}")
    def trigger(self, thr, va, vd):
        a = self.a
        lab, ok = a.newlabel('trig'), a.newlabel('trigok')
        a(f"s_lshr_b32 s54, {sH}, 2\ns_sub_u32 s54, {sH}, s54\ns_and_b32 s54, s54, 3\ns_lshl_b32 s55, {sH}, 2\ns_add_u32 s54, s54, s55")
        if thr < 64:
            a(f"s_lshl_b32 s54, s54, 13\ns_add_u32 s54, s54, {WS_APART + 6144}\ns_mov_b64 exec, {(1 << NSD) - 1}")
            a.label(lab)
            a(f"buffer_load_dword v{vd}, v2, {self.S(SRD_WS)}, s54 offen sc1\ns_waitcnt vmcnt(0)")
            a(f"v_cmp_ne_u32 vcc, -1, v{vd}\ns_bcnt1_i32_b64 s55, vcc\ns_cmp_ge_u32 s55, {thr}")
        else:
            a(f"s_lshl_b32 s54, s54, 7\ns_add_u32 s54, s54, {WS_CTR}\ns_mov_b64 exec, 1")
            a.label(lab)
            a(f"buffer_load_dword v{vd}, v2, {self.S(SRD_WS)}, s54 offen sc1\ns_waitcnt vmcnt(0)")
            a(f"v_readfirstlane_b32 s55, v{vd}\ns_cmp_ge_u32 s55, {thr}")
        a(f"s_cbranch_scc1 {ok}\ns_sleep {self.o.get('tsl', 1)}\ns_sub_u32 s101, s101, 1\ns_cbranch_scc0 {lab}\ns_mov_b32 s101, 0")
        a.label(ok)
        a("s_mov_b64 exec, -1")
    def late_loads(self, items, n):
        a = self.a
        mk = []
        for k, t in enumerate(items):
            a(t)
            if k % 8 == 7: mk.append(a.mark())
        for k in range(n):
            a.wait_for(mk[k]); self.tr_main(4 - n + k)
    def oproj_compute_publish(self, part):
        a = self.a
        for kk in range(4):
            for j in range(8):
                c = "0" if kk == 0 else f"v[{224+4*j}:{227+4*j}]"
                a(f"v_mfma_f32_16x16x32_bf16 v[{224+4*j}:{227+4*j}], v[{48+4*kk}:{51+4*kk}], v[{64+32*kk+4*j}:{67+32*kk+4*j}], {c}")
            for j in range(2):
                c = "0" if kk == 0 else f"v[{40+4*j}:{43+4*j}]"
                a(f"v_mfma_f32_16x16x32_bf16 v[{40+4*j}:{43+4*j}], v[{48+4*kk}:{51+4*kk}], v[{192+8*kk+4*j}:{195+8*kk+4*j}], {c}")
        self.y_addr(); self.y_soff(part)
        if self.o.get('fr', 1) > 1 and not self.o.get('t2', 1):
            for r in range(48, 64): a(f"v_mov_b32 v{r}, -1")
        for j in range(8): a(f"v_min_u32 v{16+j}, -2, v{224+4*j}")
        for j in range(2): a(f"v_min_u32 v{24+j}, -2, v{40+4*j}")
        self.y_store(16, 20, 24)

    def final_reduce(self, part):
        a = self.a
        skip = a.newlabel('nored')
        D = "row_mask:0xf bank_mask:0xf"
        a(f"s_lshl_b32 s54, {sW}, 5\ns_add_u32 s54, s54, s53\ns_cmp_ge_u32 s54, 72\ns_cbranch_scc1 {skip}")
        a(f"s_lshl_b32 s55, s54, 12\ns_add_u32 s55, s55, {WS_Y + part * WS_YPART}")
        a.c("output address: b = tau/18, k = tau%18")
        a(f"s_mul_hi_u32 s56, s54, {M18}\ns_mul_i32 s57, s56, 18\ns_sub_u32 s57, s54, s57")
        a(f"s_mul_i32 s56, s56, 2304\ns_add_u32 s56, s56, {1152*part}")
        a("s_lshr_b32 s58, s57, 1\ns_lshl_b32 s58, s58, 7\ns_and_b32 s59, s57, 1")
        a("s_cmp_lt_u32 s57, 16\ns_cselect_b32 s60, 3, 6\ns_cselect_b32 s61, 4, 3")
        a("s_lshl_b32 s59, s59, s60\ns_add_u32 s56, s56, s58\ns_add_u32 s56, s56, s59")
        a("v_lshlrev_b32 v5, s61, v1")
        if part: self.srd(SRD_D, P_OUT, 9216)
        self.masked_poll([(f"buffer_load_dwordx4 v[{48+4*i}:{51+4*i}], v2, {self.S(SRD_WS)}, s55 offen offset:{1024*i} sc1", 48 + 4 * i) for i in range(4)], 32, self.o.get('fr', 1))
        for r in range(4): a(f"v_add_f32 v{16+r}, v{48+r}, v{52+r}\nv_add_f32 v{24+r}, v{56+r}, v{60+r}")
        for r in range(4): a(f"v_add_f32 v{16+r}, v{16+r}, v{24+r}")
        for r in range(4): a(f"v_add_f32_dpp v{16+r}, v{16+r}, v{16+r} row_ror:8 {D}")
        for r in range(4): a(f"v_mov_b32 v{20+r}, v{16+r}")
        for r in range(4): a(f"v_permlane16_swap_b32 v{16+r}, v{20+r}")
        for r in range(4): a(f"v_add_f32 v{16+r}, v{16+r}, v{20+r}")
        for r in range(4): a(f"v_mov_b32 v{20+r}, v{16+r}")
        for r in range(4): a(f"v_permlane32_swap_b32 v{16+r}, v{20+r}")
        for r in range(4): a(f"v_add_f32 v{16+r}, v{16+r}, v{20+r}")
        a("v_cvt_pk_bf16_f32 v16, v16, v17\nv_cvt_pk_bf16_f32 v17, v18, v19")
        a("s_mov_b64 exec, 0xff")
        a(f"buffer_store_dwordx2 v[16:17], v5, {self.S(SRD_D)}, s56 offen")
        a("s_mov_b64 exec, -1")
        a.label(skip)

    def ckv_dma(self):
        a = self.a
        for i in range(8):
            a(f"s_add_u32 m0, s59, {1024*i}\ns_add_u32 s54, s58, {16384*(i>>2)}")
            a(f"buffer_load_dwordx4 v{20+(i&3)}, {self.S(SRD_A)}, s54 offen nt lds")
        a("s_add_u32 s58, s58, 32768\ns_add_u32 s59, s59, 8192")
    def ckv_regs(self, buf):
        f, base = buf
        return [f"buffer_load_dwordx4 {f}[{base+4*i}:{base+4*i+3}], v{20+(i&3)}, {self.S(SRD_A)}, s58 offen nt" +
                ("\ns_add_u32 s58, s58, 16384" if i & 3 == 3 else "") for i in range(8)]

    def qa_clear(self, half):
        a = self.a
        q1 = self.QS == 1
        a(f"v_mov_b32 v7, {OOB_WS}\nv_cmp_gt_u32 vcc, {16 if q1 else 32}, v1\nv_cndmask_b32 v123, v7, v2, vcc")
        a(f"s_lshl_b32 s98, {sH}, {10 if q1 else 12}\ns_lshl_b32 s54, {sW}, {8 if q1 else 9}\ns_add_u32 s98, s98, s54\ns_add_u32 s98, s98, {WS_QA + 2048*half}")
        if not self.o.get('noclr', 0) & 8: a(f"buffer_store_dwordx4 v[20:23], v123, {self.S(SRD_WS)}, s98 offen sc1")
    def qa_publish(self, acc):
        a = self.a
        base = LDS_X + 8192
        self.proj_store_partials(acc, 5, base)
        if self.QS == 1:
            a(f"s_lshl_b32 s54, {sW}, 9\ns_add_u32 s54, s54, {base}\nv_lshl_add_u32 v5, v3, 5, s54")
            self.sum4_pack(5, 0, 48, 124)
            for r in range(4): a(f"v_min_u32 v{124+r}, -2, v{124+r}")
            return a(f"buffer_store_dwordx4 v[124:127], v123, {self.S(SRD_WS)}, s98 offen sc1")
        a(f"s_lshl_b32 s54, {sW}, 9\ns_add_u32 s54, s54, {base}\nv_add_u32 v5, s54, v2")
        for w in range(4): a(f"ds_read_b128 v[{96+4*w}:{99+4*w}], v5 offset:{2048*w}")
        a("s_waitcnt lgkmcnt(0)")
        for r in range(4): a(f"v_add_f32 v{96+r}, v{96+r}, v{100+r}\nv_add_f32 v{104+r}, v{104+r}, v{108+r}")
        for r in range(4): a(f"v_add_f32 v{96+r}, v{96+r}, v{104+r}")
        for r in range(4): a(f"v_min_u32 v{124+r}, -2, v{96+r}")
        if not self.o.get('noqp'): a(f"buffer_store_dwordx4 v[124:127], v123, {self.S(SRD_WS)}, s98 offen sc1")

    def ltest(self):
        a = self.a
        m = self.o['ltest']
        a.vm_reset()
        a("s_waitcnt lgkmcnt(0)")
        self.srd(SRD_WS, P_WS, 0x20000000); self.srd(SRD_A, P_CKV, 0x1000000)
        a(f"s_lshl_b32 s55, {sH}, 2\ns_add_u32 s55, s55, {sW}\ns_lshl_b32 s55, s55, 7\ns_add_u32 s55, s55, {WS_CTR}")
        a(f"s_mov_b64 exec, 1\nv_mov_b32 v5, 0\nbuffer_store_dword v5, v5, {self.S(SRD_WS)}, s55 offen sc1\ns_mov_b64 exec, -1")
        if m == 1:
            a(f"s_lshl_b32 s54, s2, 18\ns_lshl_b32 s55, {sW}, 16\ns_add_u32 s54, s54, s55\nv_mov_b32 v5, v2"); st = 1024
        elif m == 2:
            a(f"s_lshr_b32 s54, s2, 5\ns_lshl_b32 s54, s54, 23\ns_lshl_b32 s55, {sW}, 21\ns_add_u32 s54, s54, s55\ns_lshl_b32 s55, {sH}, 8\ns_add_u32 s54, s54, s55")
            a("v_lshlrev_b32 v5, 19, v4\nv_lshl_add_u32 v5, v3, 4, v5"); st = 8192
        elif m == 3:
            a(f"s_lshl_b32 s54, s2, 18\ns_lshl_b32 s55, {sW}, 8\ns_add_u32 s54, s54, s55")
            a("v_lshlrev_b32 v5, 10, v4\nv_lshl_add_u32 v5, v3, 4, v5"); st = 4096
        elif m == 4:
            a(f"s_lshr_b32 s54, s2, 5\ns_lshl_b32 s54, s54, 23\ns_lshl_b32 s55, {sW}, 21\ns_add_u32 s54, s54, s55\ns_lshl_b32 s55, {sH}, 8\ns_add_u32 s54, s54, s55")
            a("v_lshlrev_b32 v5, 13, v4\nv_lshl_add_u32 v5, v3, 4, v5"); st = 32768
        elif m == 5:
            a(f"s_lshr_b32 s54, s2, 3\ns_lshl_b32 s54, s54, 21\ns_lshl_b32 s55, {sW}, 19\ns_add_u32 s54, s54, s55\ns_and_b32 s55, s2, 7\ns_lshl_b32 s55, s55, 10\ns_add_u32 s54, s54, s55")
            a("v_mov_b32 v5, v2"); st = 8192
        if m < 9:
            for k in range(64):
                if k >= 32: a("s_waitcnt vmcnt(31)")
                a(f"buffer_load_dwordx4 a[{4*k}:{4*k+3}], v5, {self.S(SRD_A)}, s54 offen nt\ns_add_u32 s54, s54, {st}")
        a("s_waitcnt vmcnt(0)")
        self.stamp(3); self.stamp(4)
        self.write_stamps()
        a("s_endpgm")

    def role_h(self):
        a = self.a
        a.label("L_roleH")
        if self.o.get('ltest'): self.ltest()
        if self.o.get('noH') == 1: a("s_endpgm")
        a.vm_reset(); a.vm_slack = 1
        a("s_mov_b32 s101, " + str(self.o.get("spin", 100000)))
        if self.stamps: a(f"s_mov_b32 s2, {sH}")
        self.code_prefetch("L_roleH", "L_roleH_end", 1)
        for r in range(4): a(f"v_mov_b32 v{20+r}, -1")
        self.y_addr(); self.y_soff(1)
        a("s_waitcnt lgkmcnt(0)")
        self.srd(SRD_WS, P_WS, 0x20000000)
        nc = self.o.get('noclr', 0)
        if not nc & 1: self.y_store(20, 20, 20)
        if not nc & 4: self.qabs_store(20)
        if self.EPI and not nc & 16: self.ctx_store(20)
        st = Stream(a, self.o.get('hahead', 28))
        wl = lambda base, t, v, srd, so: f"buffer_load_dwordx4 a[{base+4*t}:{base+3+4*t}], v{v}, {self.S(srd)}, s{so} offen nt\ns_add_u32 s{so}, s{so}, 8192"
        if self.QS == 2:
            self.qa_clear(0)
            mC = a.mark()
            if self.o.get('noH') == 2: a("s_endpgm")
            self.srd(SRD_C, P_WQ, 576 * 8192); self.srd(SRD_D, P_AX, 4608)
            self.x_loads(SRD_D, 24, 18, 0)
            self.wq_addr(18, 0)
            iWA = [st.add([wl(0, t, 120, SRD_C, 61) for t in range(9 * g, 9 * g + 9)]) for g in range(2)]
            if self.o.get('sig1'):
                st.issue(self.o.get('sigat', 9))
                a.wait_for(mC); a("s_barrier")
                self.signal(None); self.stamp(6)
            st.issue(18)
        else: mC = a.mark()
        self.srd(SRD_A, P_BWQ, 576 * 8192); self.srd(SRD_B, P_BX, 4608)
        self.x_loads(SRD_B, 48)
        self.wq_addr()
        iW = [st.add([wl(112, t, 120, SRD_A, 61) for t in range(9 * g, 9 * g + 9)]) for g in range(4)]
        st.issue(iW[0])
        if self.QS == 1:
            a.wait_for(mC); a("s_barrier")
            self.signal(None); self.stamp(6)
            st.issue(iW[1])
        a.c("w_uk rows 128w + 4i + g -> LDS w*32K + row*256, chunk n holds column chunk n ^ (g<<2) ^ ((i>>1)&3)")
        self.srd(SRD_B, P_WUK, 512 * 8192); self.srd(SRD_C, P_WUV, 512 * 8192)
        a("v_lshlrev_b32 v5, 2, v4\nv_xor_b32 v5, v5, v3\nv_lshlrev_b32 v6, 13, v4")
        for m in range(4): a(f"v_xor_b32 v7, {m}, v5\nv_lshl_add_u32 v{88+m}, v7, 4, v6")
        a(f"s_lshl_b32 s62, {sW}, 20\ns_lshl_b32 s54, {sH}, 8\ns_add_u32 s62, s62, s54\ns_mov_b32 s60, s62\ns_lshl_b32 s63, {sW}, 15")
        iU = [st.add([f"s_add_u32 m0, s63, {1024*i}\ns_nop 0\nbuffer_load_dwordx4 v{88+((i>>1)&3)}, {self.S(SRD_B)}, s60 offen nt lds\ns_add_u32 s60, s60, 32768"
                      for i in range(8 * g, 8 * g + 8)]) for g in range(4)]
        a.c("w_uv -> a[4t]: row = 128w + 32g + t")
        a(f"v_lshlrev_b32 v121, 18, v4\nv_lshl_add_u32 v121, v3, 4, v121")
        a.c("P2 read addresses v[92:95]")
        a("v_lshrrev_b32 v5, 2, v3\nv_and_b32 v6, 3, v3\nv_lshl_add_u32 v7, v5, 3, v6\nv_lshlrev_b32 v92, 8, v7")
        a("v_lshl_or_b32 v5, v6, 2, v5\nv_xor_b32 v5, v5, v4\nv_lshl_add_u32 v92, v5, 4, v92\nv_add_u32 v92, s63, v92")
        for kk in range(1, 4): a(f"v_xor_b32 v{92+kk}, {64*kk}, v92")
        self.selectors()
        if self.QS == 2:
            if not self.o.get('sig1'):
                a.wait_for(mC); a("s_barrier")
                self.signal(None); self.stamp(6)
            for g in range(2):
                st.need(iWA[g])
                self.proj_mfma(list(range(9 * g, 9 * g + 9)), 24, 12, 96, 112, lambda t: f"a[{4*t}:{4*t+3}]", g == 0)
            self.qa_publish(112)
        self.stamp(1)
        if self.o.get('onlyA'):
            self.write_stamps(); a("s_endpgm")
        for g in range(4):
            st.need(iW[g])
            self.proj_mfma(list(range(9 * g, 9 * g + 9)), 48, 20, 96, 112, lambda t: f"a[{112+4*t}:{115+4*t}]", g == 0)
        self.proj_store_partials(112, 5)
        st.issue(iU[3])
        self.operand_from_partials(5, 48, 96)
        self.stamp(2)
        a.c("P2: q_abs tiles -> v[48+4T..]; tile T row i -> c = 128w + 32(T>>1) + 8(i>>2) + 4(T&1) + (i&3)")
        for P in range(4):
            st.need(iU[P])
            for T in (2 * P, 2 * P + 1):
                for kk in range(4):
                    r = 128 + 16 * (T & 3) + 4 * kk
                    a(f"ds_read_b128 v[{r}:{r+3}], v{92+kk} offset:{(32*(T>>1) + 4*(T&1)) * 256}")
            for T in (2 * P, 2 * P + 1):
                for kk in range(4):
                    a(f"s_waitcnt lgkmcnt({7 - 4*(T&1) - kk})")
                    c = "0" if kk == 0 else f"v[{48+4*T}:{51+4*T}]"
                    r = 128 + 16 * (T & 3) + 4 * kk
                    a(f"v_mfma_f32_16x16x32_bf16 v[{48+4*T}:{51+4*T}], v[{r}:{r+3}], v[{96+4*kk}:{99+4*kk}], {c}")
        a(f"s_mov_b32 s96, {f2u(SCALE * LOG2E)}")
        a("v_and_b32 v6, 3, v3")
        for P in range(1, 4):
            a(f"v_cmp_eq_u32 vcc, {P}, v6")
            for r in range(8): a(f"v_cndmask_b32 v{48+r}, v{48+r}, v{48+8*P+r}, vcc")
        for r in range(8): a(f"v_mul_f32 v{48+r}, s96, v{48+r}")
        for r in range(4): a(f"v_cvt_pk_bf16_f32 v{24+r}, v{48+2*r}, v{49+2*r}")
        for r in range(4): a(f"v_min_u32 v{24+r}, -2, v{24+r}")
        self.qabs_store(24)
        self.stamp(3)
        for t in range(32): a(wl(0, t, 121, SRD_C, 62))
        if self.EPI:
            self.flags_issue(16, 17)
            a("s_waitcnt vmcnt(0)")
        else:
            self.srd(SRD_B, P_BWO, 32 * 147456)
            self.oproj_addr()
            main, extra = self.oproj_list(SRD_B)
            self.issue_capped(main)
            self.flags_issue(16, 17)
            self.issue_capped(extra)
            a("s_waitcnt vmcnt(0)")
            self.oproj_transpose()
        a("s_barrier")
        self.stamp(4)
        if self.o.get('hexit') == 1: self.write_stamps(); a("s_endpgm")
        self.flags_check(16, 17)
        D = "row_mask:0xf bank_mask:0xf"
        a.c("P6: combine the 8 splits of (h, b=w); (m, l) of a split is written after its data has been acknowledged")
        a(f"s_lshl_b32 s58, {sW}, 18\ns_lshl_b32 s54, {sH}, 10\ns_add_u32 s58, s58, s54\ns_add_u32 s58, s58, {WS_BO}")
        a(f"s_lshl_b32 s59, {sW}, 11\ns_lshl_b32 s54, {sH}, 3\ns_add_u32 s59, s59, s54\ns_add_u32 s59, s59, {WS_BML}")
        a("s_mov_b32 s98, 0xffff0000\nv_and_b32 v5, 7, v1\nv_lshlrev_b32 v5, 8, v5")
        light, heavy = a.newlabel('blight'), a.newlabel('bheavy')
        a.label(light)
        a(f"buffer_load_dwordx2 v[232:233], v5, {self.S(SRD_WS)}, s59 offen sc1")
        a(f"s_waitcnt vmcnt(0)\nv_max_u32 v6, v232, v233\nv_cmp_eq_u32 vcc, -1, v6\ns_cbranch_vccz {heavy}\ns_sleep {self.o.get('bsl', 2)}\ns_sub_u32 s101, s101, 1\ns_cbranch_scc0 {light}\ns_mov_b32 s101, 0")
        a.label(heavy)
        self.stamp(5)
        for s in range(8):
            a(f"buffer_load_dwordx4 v[{16+4*s}:{19+4*s}], v2, {self.S(SRD_WS)}, s58 offen sc1 nt\ns_add_u32 s58, s58, 32768")
        a(f"v_max_f32_dpp v234, v232, v232 row_ror:1 {D}\nv_max_f32_dpp v234, v234, v234 row_ror:2 {D}\nv_max_f32_dpp v234, v234, v234 row_ror:4 {D}")
        a("v_sub_f32 v232, v232, v234\nv_exp_f32 v232, v232\nv_mul_f32 v232, v232, v233")
        a(f"v_add_f32_dpp v234, v232, v232 row_ror:1 {D}\nv_add_f32_dpp v234, v234, v234 row_ror:2 {D}\nv_add_f32_dpp v234, v234, v234 row_ror:4 {D}")
        a("v_rcp_f32 v234, v234\nv_mul_f32 v232, v232, v234")
        for s in range(8):
            a(f"s_waitcnt vmcnt({7-s})")
            op = "v_mul_f32_dpp" if s == 0 else "v_fmac_f32_dpp"
            for q in range(4): a(f"v_lshlrev_b32 v{240+q}, 16, v{16+4*s+q}\nv_and_b32 v{16+4*s+q}, s98, v{16+4*s+q}")
            for q in range(4): a(f"{op} v{224+2*q}, v232, v{240+q} row_newbcast:{s} {D}\n{op} v{225+2*q}, v232, v{16+4*s+q} row_newbcast:{s} {D}")
        for q in range(4): a(f"v_cvt_pk_bf16_f32 v{244+q}, v{224+2*q}, v{225+2*q}")
        a(f"s_lshl_b32 s54, {sW}, 10\nv_add_u32 v5, s54, v2")
        a("ds_write_b128 v5, v[244:247]")
        a.c("P7: ctx = O_lat @ w_uv")
        a(f"v_lshrrev_b32 v5, 3, v3\nv_lshlrev_b32 v5, 10, v5\nv_lshl_add_u32 v5, v4, 6, v5\ns_lshl_b32 s54, {sW}, 8\nv_add_u32 v5, s54, v5")
        a("s_waitcnt lgkmcnt(0)\ns_barrier")
        for p in range(2):
            for k in range(4): a(f"ds_read_b128 v[{16+16*p+4*k}:{19+16*p+4*k}], v5 offset:{2048*p+16*k}")
        a("s_waitcnt lgkmcnt(0)")
        self.proj_mfma(list(range(32)), 16, 16, 48, 224, lambda t: f"a[{4*t}:{4*t+3}]", True)
        self.proj_store_partials(224, 5)
        if self.EPI:
            a(f"v_lshrrev_b32 v5, 2, v3\nv_lshlrev_b32 v5, 9, v5\nv_lshl_add_u32 v5, v4, 5, v5\ns_lshl_b32 s54, {sW}, 7\ns_add_u32 s54, s54, {LDS_X}\nv_add_u32 v5, s54, v5")
            self.sum4_pack(5, 0, 16, 64)
            for r in range(4): a(f"v_min_u32 v{64+r}, -2, v{64+r}")
            self.ctx_store(64)
            self.stamp(8)
            if self.o.get('hexit') == 2: self.write_stamps(); a("s_endpgm")
            self.srd(SRD_D, P_OUT, 9216)
            self.final_reduce2(1, self.o.get('lazy', 4))
            self.stamp(9)
        else:
            self.operand_from_partials(5, 16, 48)
            self.stamp(6)
            self.oproj_compute_publish(1)
            self.stamp(7)
        if self.EPI: pass
        elif self.o.get('t2', 1):
            self.srd(SRD_D, P_OUT, 9216)
            self.final_reduce2(1, 0)
            self.stamp(8)
            self.final_reduce2(0, self.o.get('lazy', 4))
            self.stamp(9)
        else:
            self.final_reduce(1)
            self.stamp(8)
        self.write_stamps()
        a("s_endpgm")
        a.label("L_roleH_end")

    def role_c(self):
        a = self.a
        D = "row_mask:0xf bank_mask:0xf"
        a.label("L_roleC")
        if self.o.get('noC'): a("s_endpgm")
        if self.o.get('ltest'): a("s_branch L_roleH")
        if self.o.get('wtest'):
            fl = ['sc1', 'sc1 nt', 'sc0 sc1', '', 'nt', 'sc0 sc1 nt'][self.o.get('wfl', 0)]
            a("s_waitcnt lgkmcnt(0)")
            self.srd(SRD_WS, P_WS, 0x20000000)
            a(f"s_lshl_b32 s54, {sH}, 2\ns_add_u32 s54, s54, {sW}\ns_lshl_b32 s54, s54, {10 if self.o.get('wdense') else 16}")
            if self.o.get('wdel'):
                for _ in range(self.o['wdel']): a("s_sleep 127")
            if self.o.get('wstag'):
                a(f"s_lshl_b32 s55, {sH}, 2\ns_add_u32 s55, s55, {sW}\nL_stag:\ns_sleep {self.o['wstag']}\ns_sub_u32 s55, s55, 1\ns_cbranch_scc0 L_stag")
            a(f"s_lshl_b32 s55, {sH}, 2\ns_add_u32 s55, s55, {sW}\ns_lshl_b32 s55, s55, 7\ns_add_u32 s55, s55, {WS_CTR}")
            a(f"s_mov_b64 exec, 1\nv_mov_b32 v5, 0\nbuffer_store_dword v5, v5, {self.S(SRD_WS)}, s55 offen sc1\ns_mov_b64 exec, -1\ns_add_u32 s54, s54, 0x2000000")
            per = self.o.get('wper', 999)
            mode = self.o.get('wld', 0)
            if self.o.get('wsp'): a("v_lshlrev_b32 v2, 7, v1")
            stp = 8192 if self.o.get('wsp') else 131072 if self.o.get('wdense') else 1024
            for k in range(self.o['wtest']):
                if self.o.get('wsl'): a(f"s_sleep {self.o['wsl']}")
                if mode == 2 and k == per: a("s_xor_b32 s54, s54, 0x40000")
                a(f"s_add_u32 s55, s54, {stp * (k % per)}")
                if mode == 1 or (mode == 2 and k >= per): a(f"buffer_load_dwordx4 v[24:27], v2, {self.S(SRD_WS)}, s55 offen {fl}")
                elif mode == 3: a(f"v_lshlrev_b32 v2, 3, v1\nbuffer_store_dwordx2 v[20:21], v2, {self.S(SRD_WS)}, s55 offen {fl}")
                elif mode == 4: a(f"s_mov_b64 exec, 1\nbuffer_atomic_add v20, v2, {self.S(SRD_WS)}, s54 offen sc0\nbuffer_atomic_add v21, v2, {self.S(SRD_WS)}, s54 offen sc0\nbuffer_atomic_add v22, v2, {self.S(SRD_WS)}, s54 offen sc0\nbuffer_atomic_add v23, v2, {self.S(SRD_WS)}, s54 offen sc0\ns_waitcnt vmcnt(30)")
                elif mode == 5: a(f"v_lshlrev_b32 v2, 5, v1\nv_and_b32 v2, 0xf80, v2\nv_and_b32 v5, 3, v1\nv_lshl_add_u32 v2, v5, 4, v2\nbuffer_store_dwordx4 v[20:23], v2, {self.S(SRD_WS)}, s55 offen {fl}")
                else: a(f"buffer_store_dwordx4 v[20:23], v2, {self.S(SRD_WS)}, s55 offen {fl}")
            a("s_waitcnt vmcnt(0)\ns_endpgm")
        a.vm_reset(); a.vm_slack = 1
        a("s_mov_b32 s101, " + str(self.o.get("spin", 100000)))
        if self.stamps: a(f"s_add_u32 s2, {sH}, 32")
        self.code_prefetch("L_roleC", "L_roleC_end", 2)
        for r in range(4): a(f"v_mov_b32 v{20+r}, -1")
        self.y_addr(); self.y_soff(0)
        a("s_waitcnt lgkmcnt(0)")
        self.srd(SRD_WS, P_WS, 0x20000000)
        nc = self.o.get('noclr', 0)
        if not nc & 1: self.y_store(20, 20, 20)
        self.qa_clear(self.QS - 1)
        a.c("clear the partial slots of (h, b=w) and zero the tile counter")
        self.part_addr(NSH)
        self.is_shared(); a(f"s_mov_b32 s56, {(1 << NSH) - 1}\ns_cselect_b32 s56, {(1 << NSD) - 1}, s56\ns_mov_b32 s57, 0\ns_cbranch_scc0 L_cclr")
        for k in range(NSH // 4, NSD // 4):
            if not nc & 2: a("buffer_store_dwordx4 v[20:23], " + self.part_io(k))
        a((f"s_and_b32 s55, {sH}, 28" if self.o.get('cdn') else f"s_lshl_b32 s55, {sH}, 2") + f"\ns_add_u32 s55, s55, {sW}\ns_mul_i32 s55, s55, {self.CST}\ns_add_u32 s55, s55, {self.CTR}")
        a(f"v_mov_b32 v5, 0\ns_mov_b64 exec, 1\nbuffer_store_dword v5, v5, {self.S(SRD_WS)}, s55 offen sc1")
        if self.EPI == 2: a(f"s_lshl_b32 s55, {sH}, 7\ns_add_u32 s55, s55, {WS_UCTR}\nbuffer_store_dword v5, v5, {self.S(SRD_WS)}, s55 offen sc1")
        a.c("(m, l) of this workgroup's split: 256 B")
        a(f"s_lshl_b32 s55, s53, 8\ns_add_u32 s55, s55, {WS_BML}\ns_mov_b64 exec, 0xffff\nbuffer_store_dwordx4 v[20:23], v2, {self.S(SRD_WS)}, s55 offen sc1\ns_mov_b64 exec, -1")
        a.label("L_cclr")
        for k in range(NSH // 4):
            if not nc & 2: a("buffer_store_dwordx4 v[20:23], " + self.part_io(k))
        a(f"s_mov_b64 exec, s[56:57]\nbuffer_store_dwordx4 v[20:23], v2, {self.S(SRD_WS)}, s59 offen offset:2048 sc1\ns_mov_b64 exec, -1")
        mC = a.mark()
        if self.o.get('noH'): a("s_endpgm")
        self.srd(SRD_C, P_WQ, 576 * 8192); self.srd(SRD_D, P_AX, 4608); self.srd(SRD_A, P_CKV, 0x1000000)
        T, row0 = (18, 288) if self.QS == 2 else (36, 0)
        self.x_loads(SRD_D, 48, T, row0)
        self.wq_addr(T, row0)
        mW = []
        for g in range(T // 9):
            self.wq_loads(range(9 * g, 9 * g + 9), SRD_C, 'nt', 0); mW.append(a.mark())
            if g == 0 and self.o.get('sig1'):
                a.wait_for(mC); a("s_barrier")
                self.signal(None); self.stamp(6)
        self.selectors()
        if not self.o.get('sig1'):
            a.wait_for(mC); a("s_barrier")
            self.signal(None); self.stamp(6)
        a.c("c_kv DMA setup: b = c>>3, s = c&7; voffsets v[20:23]")
        a("v_lshlrev_b32 v5, 2, v4\nv_xor_b32 v5, v5, v3\nv_lshlrev_b32 v6, 10, v4")
        for i in range(4):
            a(f"v_xor_b32 v7, {i}, v5\nv_lshl_add_u32 v{20+i}, v7, 4, v6")
            if i: a(f"v_add_u32 v{20+i}, {4096*i}, v{20+i}")
        a(f"s_lshl_b32 s58, s53, 19\ns_lshl_b32 s54, {sW}, 8\ns_add_u32 s58, s58, s54")
        a(f"s_lshl_b32 s63, {sW}, 15\ns_mov_b32 s59, s63")
        self.ckv_dma()
        for g in range(T // 9):
            a.wait_for(mW[g])
            self.proj_mfma(list(range(9 * g, 9 * g + 9)), 48, xs(T), 96, 112, lambda t: f"a[{4*t}:{4*t+3}]", g == 0)
        self.qa_publish(112)
        self.stamp(1)
        if self.o.get('onlyA'):
            a("s_waitcnt vmcnt(0)")
            self.write_stamps(); a("s_endpgm")
        for _ in range(3): self.ckv_dma()
        RB = [('a', 96), ('a', 128), ('a', 160), ('a', 192), ('a', 224), ('v', 224)][:self.o.get('nb', 6)]
        NB = len(RB)
        a.c("the next tiles wait in registers")
        NP = self.o.get('npre', NB)
        for k in range(NP):
            a("s_waitcnt vmcnt(40)")
            if k == max(NP - 2, 0): self.flags_issue(27, 18); mF = a.mark()
            for t in self.ckv_regs(RB[k]): a(t)
        self.srd(SRD_B, P_WO, 32 * 147456)
        self.oproj_addr(48)
        a("v_add_u32 v26, s63, v2")
        a.c("LDS addresses: v[32:39] QK reads, v[40:47] tr reads, v[28:31] X (own, ^1, ^2, ^3); v19 q_abs voffset")
        a("v_and_b32 v24, 31, v1\nv_lshrrev_b32 v25, 5, v1\nv_lshlrev_b32 v19, 10, v24\nv_lshl_add_u32 v19, v25, 4, v19")
        a(f"s_lshr_b32 s96, s53, 3\ns_lshl_b32 s96, s96, 15\ns_lshl_b32 s55, {sW}, 8\ns_add_u32 s96, s96, s55\ns_add_u32 s96, s96, {WS_QABS}")
        a("v_and_b32 v5, 3, v24\nv_lshlrev_b32 v5, 2, v5\nv_bfe_u32 v6, v24, 2, 2\nv_or_b32 v5, v5, v6\nv_xor_b32 v5, v5, v25")
        a("v_lshlrev_b32 v32, 8, v24\nv_lshl_add_u32 v32, v5, 4, v32\nv_add_u32 v32, s63, v32")
        a("v_bfe_u32 v5, v1, 2, 2")
        a("v_lshl_add_u32 v6, v25, 2, v5\nv_lshlrev_b32 v40, 8, v6")
        a("v_and_b32 v6, 1, v1\nv_lshl_add_u32 v40, v6, 3, v40")
        a("v_bfe_u32 v6, v1, 4, 1\nv_lshlrev_b32 v6, 1, v6\nv_bfe_u32 v7, v1, 1, 1\nv_or_b32 v6, v6, v7\nv_xor_b32 v6, v6, v25")
        a("v_lshl_or_b32 v6, v5, 2, v6\nv_lshl_add_u32 v40, v6, 4, v40\nv_add_u32 v40, s63, v40")
        for k in range(1, 8): a(f"v_xor_b32 v{32+k}, {32*k}, v32\nv_xor_b32 v{40+k}, {32*k}, v40")
        a(f"s_lshl_b32 s54, {sW}, 12\ns_add_u32 s54, s54, {LDS_X}\nv_add_u32 v28, s54, v2")
        for k in range(1, 4): a(f"v_xor_b32 v{28+k}, {4096*k}, v28")
        for r in range(64): a(f"v_mov_b32 v{64+r}, 0")
        a("v_mov_b32 v216, 0xff800000\nv_mov_b32 v217, 0")
        if NP < NB: a.wait_for(mF)
        else: a("s_waitcnt vmcnt(0)")
        self.stamp(2)
        a.vm_count = False
        self.flags_check(27, 18)
        a.vm_count = True
        a("s_barrier")
        QKr = lambda sl: [f"ds_read_b128 a[{32+4*kk}:{35+4*kk}], v{32+kk} offset:{8192*sl}" for kk in range(8)]
        for t in QKr(0): a(t)
        self.stamp(3)
        a.c("P3: q_abs fragments a[0:31]: lane (head=l&31, hh=l>>5); only the lanes still missing are read again")
        qpoll, qok = a.newlabel('qpoll'), a.newlabel('qok')
        ql = [f"buffer_load_dwordx4 v[{128+4*kk}:{131+4*kk}], v19, {self.S(SRD_WS)}, s96 offen offset:{32*kk} sc1" for kk in range(8)]
        lmark = {}
        if NP < NB:
            for t in ql: a(t)
            mQ = a.mark()
            for i, t in enumerate(self.ckv_regs(RB[NP])): a(t); lmark[(4 + NP, i)] = a.mark()
            a.wait_for(mQ)
            a(f"s_branch {qpoll}_c")
            NP += 1
            a.vm_count = False
        a.label(qpoll)
        if self.o.get('qsl'): a(f"s_sleep {self.o['qsl']}")
        for t in ql: a(t)
        a("s_waitcnt vmcnt(0)")
        a.vm_count = True
        a.label(qpoll + "_c")
        self.umax(5, list(range(128, 160)), 6)
        a(f"v_cmp_eq_u32 vcc, -1, v5\ns_mov_b64 exec, vcc\ns_cbranch_execz {qok}\ns_sub_u32 s101, s101, 1\ns_cbranch_scc0 {qpoll}\ns_mov_b32 s101, 0")
        a.label(qok)
        a("s_mov_b64 exec, -1")
        for r in range(32): a(f"v_accvgpr_write_b32 a{r}, v{128+r}")
        QKm = [f"v_mfma_f32_32x32x16_bf16 v[128:143], a[{32+4*kk}:{35+4*kk}], a[{4*kk}:{4*kk+3}], " + ("0" if kk == 0 else "v[128:143]") for kk in range(8)]
        TR = lambda sl: [f"ds_read_b64_tr_b16 a[{64+(T*2+t)*4+2*u}:{65+(T*2+t)*4+2*u}], v{40+2*T+u} offset:{8192*sl+(16*t+8*u)*256}"
                         for t in range(2) for T in range(4) for u in range(2)]
        Xw = lambda xb: [f"ds_write_b128 v28, v[{128+4*q}:{131+4*q}] offset:{16384*xb+1024*q}" for q in range(4)]
        Xr = lambda xb: [f"ds_read_b128 v[{128+16*k+4*q}:{131+16*k+4*q}], v{28+k} offset:{16384*xb+1024*q}" for k in range(1, 4) for q in range(4)]
        a("s_waitcnt lgkmcnt(0)")
        self.stamp(10)
        for t in QKm + Xw(0): a(t)
        a("s_waitcnt lgkmcnt(0)\ns_barrier")
        for t in Xr(0): a(t)
        wr_it = {t: (t - 4 if t < 4 + NP else t - 2) for t in range(4, 16)}
        free_at = {}
        pend = []
        for t in range(4 + NP, 16):
            pend += [(x, wr_it.get(t - NB, -1), t, i) for i, x in enumerate(self.ckv_regs(RB[(t - 4) % NB]))]
        for t in range(4, 16): free_at[RB[(t - 4) % NB]] = wr_it[t]
        main, extra = self.oproj_list(SRD_B, 'a', 48)
        LATE = self.o.get('late', 0)
        main = main[:32 - 8 * LATE]
        if self.EPI: main, extra = [], []
        NM = len(main)
        wo = [(x, free_at.get(('a', 96 + 32 * (k // 8)), -1), 99, k) for k, x in enumerate(main)] + [(x, free_at.get(('a', 224), -1), 99, 0) for x in extra]
        pend += wo
        pace = [int(c, 16) for c in str(self.o.get('pace', '8866666666666200'))]
        PV = lambda t, T: f"v_mfma_f32_32x32x16_bf16 v[{64+16*T}:{79+16*T}], a[{64+(T*2+t)*4}:{67+(T*2+t)*4}], v[{208+4*t}:{211+4*t}], v[{64+16*T}:{79+16*T}]"
        def emit(items):
            for t in items:
                if isinstance(t, str): a(t)
                else: t()
        def load(p):
            def f():
                a(p[0]); lmark[(p[2], p[3])] = a.mark()
            return f
        def write(t, i):
            def f():
                if (t, i) in lmark: a.wait_for(lmark[(t, i)])
                else: assert t < 4 + NP
                fb, base = RB[(t - 4) % NB]
                a(f"ds_write_b128 v26, {fb}[{base+4*i}:{base+4*i+3}] offset:{8192*(t&3)+1024*i}")
            return f
        for it in range(16):
            sl, nx, last = it & 3, (it + 1) & 3, it == 15
            early, late = [], []
            if it in (2, 4, 8, 12): self.stamp({2: 11, 4: 12, 8: 13, 12: 14}[it])
            while len(early) + len(late) < pace[it] and pend and pend[0][1] <= it:
                p = pend.pop(0)
                (early if p[1] < it and len(early) < pace[it] // 2 and not late else late).append(p)
            wt = [t for t in wr_it if wr_it[t] == it]
            if not last:
                for t in QKr(nx): a(t)
                a("s_waitcnt lgkmcnt(8)")
            else: a("s_waitcnt lgkmcnt(0)")
            emit(mix([f"v_add_f32 v{144+r}, v{144+r}, v{128+r}" for r in range(16)], [load(p) for p in early[:1]], 8, 4))
            v = [f"v_add_f32 v{160+r}, v{160+r}, v{176+r}" for r in range(16)]
            v += [f"v_add_f32 v{144+r}, v{144+r}, v{160+r}" for r in range(16)]
            v += ["v_max3_f32 v218, v144, v145, v146", "v_max3_f32 v219, v147, v148, v149", "v_max3_f32 v220, v150, v151, v152", "v_max3_f32 v221, v153, v154, v155",
                  "v_max3_f32 v218, v218, v156, v157", "v_max3_f32 v219, v219, v158, v159", "v_max3_f32 v218, v218, v219, v220", "v_max_f32 v218, v218, v221"]
            a("s_waitcnt lgkmcnt(0)")
            tr = TR(sl)
            side = [("" if last else QKm[k] + "\n") + tr[2*k] + "\n" + tr[2*k+1] for k in range(8)]
            for t in mix(v, side, 5): a(t)
            a("v_mov_b32 v219, v218\nv_permlane32_swap_b32 v218, v219\nv_max3_f32 v218, v218, v219, v216")
            a("v_sub_f32 v220, v216, v218\nv_mov_b32 v216, v218\nv_exp_f32 v220, v220")
            emit(mix([f"v_sub_f32 v{192+r}, v{144+r}, v218" for r in range(16)], [load(p) for p in early[1:]], 5, 2))
            v = [f"v_exp_f32 v{192+r}, v{192+r}" for r in range(16)]
            for t in mix(v, [] if last else Xw(nx & 1), 4): a(t)
            a("v_mul_f32 v217, v217, v220")
            for r in range(8): a(f"v_cvt_pk_bf16_f32 v{208+r}, v{192+2*r}, v{193+2*r}")
            for r in range(16): a(f"v_mul_f32 v{64+r}, v{64+r}, v220")
            a("s_waitcnt lgkmcnt(0)")
            if not last: a("s_barrier")
            side = []
            for i in range(8):
                g = [write(t, i) for t in wt]
                n = (len(late) * (i + 1) + 7) // 8 - (len(late) * i + 7) // 8
                side.append(g)
            k = 0
            for j, p in enumerate(late):
                pos = max(k, j * 8 // max(len(late), 1), p[3] % 8 if p[1] == it and p[2] != 99 or (p[1] == it and p in wo[:NM]) else 0)
                if p[1] == it and p in wo[NM:]: pos = 7
                side[pos].append(load(p)); k = pos
            xr = [] if last else Xr(nx & 1)
            for T in range(4):
                a(PV(0, T))
                if T < 3:
                    v = [f"v_mul_f32 v{80+16*T+r}, v{80+16*T+r}, v220" for r in range(16)]
                    v = mix(v, xr[4*T:4*T+4], 2)
                    v = mix(v, [PV(1, T)], 1, 8)
                else:
                    v = [f"v_add_f32 v{192+r}, v{192+r}, v{200+r}" for r in range(8)] + [PV(1, T)]
                    v += [f"v_add_f32 v{192+r}, v{192+r}, v{196+r}" for r in range(4)]
                    v += ["v_add_f32 v192, v192, v193", "v_add_f32 v194, v194, v195", "v_add_f32 v192, v192, v194", "v_add_f32 v217, v217, v192"]
                grp = [(lambda g: (lambda: emit(g)))(g) for g in side[2*T:2*T+2]]
                emit(mix(v, grp, 8, 4))
        assert all(p[2] == 99 for p in pend)
        rest = [p[0] for p in pend]
        a("s_waitcnt lgkmcnt(0)")
        self.stamp(4)
        if self.o.get('cexit') == 1: self.write_stamps(); a("s_endpgm")
        a.c("P5: normalise, transpose through the wave's own ring region, publish")
        a("v_mov_b32 v219, v217\nv_permlane32_swap_b32 v217, v219\nv_add_f32 v217, v217, v219\nv_rcp_f32 v220, v217")
        a(f"v_mul_u32_u24 v5, 272, v24\nv_lshl_add_u32 v5, v25, 3, v5\nv_add_u32 v5, s63, v5")
        for r in range(64): a(f"v_mul_f32 v{64+r}, v{64+r}, v220")
        for r in range(32): a(f"v_cvt_pk_bf16_f32 v{128+r}, v{64+2*r}, v{65+2*r}")
        for r in (216, 217): a(f"v_min_u32 v{r}, -2, v{r}")
        a(f"v_mov_b32_dpp v218, v216 quad_perm:[1,1,3,3] {D}\nv_mov_b32_dpp v219, v217 quad_perm:[1,1,3,3] {D}")
        for k in range(16): a(f"ds_write_b64 v5, v[{128+2*k}:{129+2*k}] offset:{16*k}")
        a(f"v_mul_u32_u24 v6, 272, v4\nv_lshl_add_u32 v6, v3, 4, v6\nv_add_u32 v6, s63, v6")
        a("s_waitcnt lgkmcnt(0)")
        for k in range(8): a(f"ds_read_b128 v[{64+4*k}:{67+4*k}], v6 offset:{272*4*k}")
        a("v_lshlrev_b32 v7, 10, v4\nv_lshl_add_u32 v7, v3, 4, v7")
        a(f"s_lshl_b32 s54, s53, 15\ns_lshl_b32 s55, {sW}, 8\ns_add_u32 s54, s54, s55\ns_add_u32 s54, s54, {WS_BO}")
        for k in range(8):
            a(f"s_waitcnt lgkmcnt({7-k})")
            a(f"buffer_store_dwordx4 v[{64+4*k}:{67+4*k}], v7, {self.S(SRD_WS)}, s54 offen sc1" + (" nt" if self.o.get('bont') else ""))
            a("s_add_u32 s54, s54, 4096")
        mP = a.mark()
        n1 = self.o.get('wo1', 8)
        for t in rest[:n1]: a(t)
        rest = rest[n1:]
        a(f"v_lshlrev_b32 v5, 3, v1\ns_lshl_b32 s54, s53, 8\ns_add_u32 s54, s54, {WS_BML}\ns_cmp_eq_u32 {sW}, 0\ns_cselect_b32 s56, 0x55555555, 0\ns_mov_b32 s57, 0")
        a.wait_for(mP); a("s_barrier")
        a(f"s_mov_b64 exec, s[56:57]\nbuffer_store_dwordx4 v[216:219], v5, {self.S(SRD_WS)}, s54 offen sc1\ns_mov_b64 exec, -1")
        self.stamp(15)
        if self.o.get('cexit') == 2: self.write_stamps(); a("s_endpgm")
        if self.EPI:
            self.srd(SRD_D, P_OUT, 9216)
            self.final_reduce2(0, self.o.get('lazy', 4))
            self.stamp(9)
            self.write_stamps()
            a("s_endpgm")
            a.label("L_roleC_end")
            return
        self.issue_capped(rest)
        self.stamp(5)
        a("s_waitcnt vmcnt(0)")
        if LATE:
            for r in list(range(96, 224 - 32 * LATE)) + list(range(224, 256)): a(f"v_accvgpr_read_b32 v{r}, a{r}")
            a("s_mov_b32 s24, 0x05040100\ns_mov_b32 s25, 0x07060302")
            for rb in range(4 - LATE): self.tr_main(rb)
            self.tr_extra(0, 16)
        else:
            for r in range(96, 256): a(f"v_accvgpr_read_b32 v{r}, a{r}")
            self.oproj_transpose()
        self.stamp(6)
        if self.o.get('t2', 1):
            a.c("P9: wait for the partials of (h, b=w)")
            a(f"s_mov_b32 s97, {f2u(LOG2E)}\ns_mov_b32 s98, 0xffff0000")
            self.y_addr(); self.y_soff(0)
            a("v_mov_b32 v0, v6\nv_mov_b32 v1, v7\ns_mov_b32 s60, s54\ns_mov_b32 s61, s55\ns_mov_b32 s62, s56")
            self.pv_masks()
            for r in range(16, 44): a(f"v_mov_b32 v{r}, -1")
            a(f"s_lshl_b32 s54, {sW}, 9\nv_lshl_add_u32 v5, v3, 4, s54\nv_and_b32 v6, 1, v4\nv_lshl_add_u32 v5, v6, 3, v5\nv_lshrrev_b32 v6, 1, v4\nv_lshl_add_u32 v5, v6, 8, v5")
            a("v_lshrrev_b32 v7, 2, v3\nv_lshlrev_b32 v7, 9, v7\nv_lshl_add_u32 v7, v4, 4, v7")
            self.part_addr(NSH)
            if LATE:
                self.trigger(self.o.get('thr', 1), 44, 45)
                self.stamp(5)
                self.late_loads(self.oproj_list(SRD_B, 'v', 48)[0][NM:], LATE)
                self.stamp(6)
            if self.o.get('tal'): a("s_branch L_ctail"); a.raw(".p2align 12"); a.label("L_ctail")
            if self.o.get('dry'):
                a.c("first pass: no waiting, stores out of range (brings the code of the tail into the instruction cache)")
                a(f"s_mov_b32 s22, s101\ns_mov_b32 s101, 0\ns_mov_b32 s46, 0\ns_mov_b32 s23, 1")
                a.label("L_cpass")
            self.is_shared(); a("s_cbranch_scc1 L_cshared")
            self.combine2(NSH)
            a("s_branch L_cmerged")
            a.label("L_cshared")
            self.combine2(NSD)
            a.label("L_cmerged")
            a("ds_write_b64 v5, v[224:225]")
            a("s_waitcnt lgkmcnt(0)\ns_barrier")
            for kk in range(4): a(f"ds_read_b128 v[{48+4*kk}:{51+4*kk}], v7 offset:{64*kk}")
            self.oproj2(0, 1, 60, 0 if LATE else None)
            self.stamp(8)
            if self.o.get('dry'):
                a("s_cmp_eq_u32 s23, 0\ns_cbranch_scc1 L_cdone\ns_mov_b32 s23, 0\ns_mov_b32 s101, s22\ns_waitcnt vmcnt(0)\ns_mov_b32 s46, 0x20000000\nv_mov_b32 v44, v5")
                self.pv_masks()
                a("v_mov_b32 v5, v44")
                for r in range(16, 44): a(f"v_mov_b32 v{r}, -1")
                a("s_barrier\ns_branch L_cpass")
                a.label("L_cdone")
        else:
            a.c("P9: wait for the partials of (h, b=w)")
            self.srd(SRD_D, P_OUT, 9216)
            a(f"s_mov_b32 s97, {f2u(LOG2E)}\ns_mov_b32 s98, 0xffff0000")
            a(f"s_lshl_b32 s54, {sW}, 9\nv_lshl_add_u32 v5, v3, 4, s54\nv_lshl_add_u32 v5, v4, 2, v5")
            a("v_lshrrev_b32 v7, 2, v3\nv_lshlrev_b32 v7, 9, v7\nv_lshl_add_u32 v7, v4, 4, v7")
            self.is_shared(); a("s_cbranch_scc1 L_cshared")
            self.combine(NSH)
            a("s_branch L_cmerged")
            a.label("L_cshared")
            self.combine(NSD)
            a.label("L_cmerged")
            a("v_cvt_pk_bf16_f32 v224, v224, v225\nds_write_b32 v5, v224")
            a("s_waitcnt lgkmcnt(0)\ns_barrier")
            for kk in range(4): a(f"ds_read_b128 v[{48+4*kk}:{51+4*kk}], v7 offset:{64*kk}")
            a("s_waitcnt lgkmcnt(0)")
            self.oproj_compute_publish(0)
            self.stamp(8)
            self.final_reduce(0)
            self.stamp(9)
        self.write_stamps()
        a("s_endpgm")
        a.label("L_roleC_end")

    def build(self, header):
        a = self.a
        a.raw(header)
        al = '.p2align 12\n' if self.o.get('al', 1) else ''
        a.raw(f'.amdgcn_target "amdgcn-amd-amdhsa--gfx950"\n.text\n.globl {KN}_kernel\n{al}.p2align 8\n.type {KN}_kernel,@function\n{KN}_kernel:')
        a("s_cmp_ge_u32 s2, 256\ns_cbranch_scc1 L_exit")
        a("s_load_dwordx16 s[4:19], s[0:1], 0\ns_load_dwordx8 s[20:27], s[0:1], 64\ns_load_dwordx4 s[28:31], s[0:1], 96")
        if self.stamps:
            for i in range(64, 96): a(f"s_mov_b32 s{i}, 0")
        self.stamp(0)
        a("v_lshrrev_b32 v2, 6, v0\nv_and_b32 v1, 63, v0\nv_readfirstlane_b32 s3, v2")
        a("v_and_b32 v3, 15, v0\nv_bfe_u32 v4, v0, 4, 2\nv_lshlrev_b32 v2, 4, v1")
        a(f"s_and_b32 {sH}, s2, 31\ns_mov_b32 s53, {sH}")
        a("s_cmp_lt_u32 s2, 32\ns_cbranch_scc1 L_roleH\ns_cmp_lt_u32 s2, 64\ns_cbranch_scc1 L_roleC")
        self.role_a()
        self.role_h()
        self.role_c()
        a.label("L_exit")
        a("s_endpgm")
        a.raw(f'''.section .rodata,"a"
.p2align 6
.amdhsa_kernel {KN}_kernel
  .amdhsa_next_free_vgpr 512
  .amdhsa_next_free_sgpr 102
  .amdhsa_accum_offset 256
  .amdhsa_group_segment_fixed_size 0
  .amdhsa_kernarg_size 112
  .amdhsa_user_sgpr_count 2
  .amdhsa_user_sgpr_kernarg_segment_ptr 1
  .amdhsa_system_sgpr_workgroup_id_x 1
.end_amdhsa_kernel''')
        return a.text()

def header(stamps):
    ref = open(os.path.join(os.path.dirname(os.path.abspath(__file__)), '..', KN + '.s.ref')).read().split('\n')
    top = [l for l in ref if l.startswith(';') and '@launch' not in l][:17]
    h = '\n'.join(top) + '\n; @launch grid=(256,1,1) block=(256,1,1) lds=163840'
    if stamps: h += '\n; groups=128,256'
    h += '\n; generated by gen/gen.py (hand-written generator)'
    return h

if __name__ == '__main__':
    import argparse
    ap = argparse.ArgumentParser()
    ap.add_argument('-o', default=os.path.join(os.path.dirname(os.path.abspath(__file__)), '..', KN + '.s'))
    ap.add_argument('--stamps', action='store_true')
    ap.add_argument('--wq', default='')
    ap.add_argument('--opt', action='append', default=[])
    args = ap.parse_args()
    g = Gen(stamps=args.stamps, wq_flags=args.wq, opts={k.split('=')[0]: (k.split('=')[1] if k.startswith(('pace', 'tb')) else int(k.split('=')[1])) if '=' in k else 1 for k in args.opt})
    t = g.build(header(args.stamps))
    open(args.o, 'w').write(t)
    print(args.o, len(t), 'bytes; auto nops', g.a.nops)
```
